```python
import torch

def _softmax(x, axis=-1):
    return torch.softmax(x, dim=axis)
def _gelu(x):
    return torch.nn.functional.gelu(x, approximate="tanh")
def _silu(x):
    return torch.nn.functional.silu(x)
def _sigmoid(x):
    return torch.sigmoid(x)
def _layernorm(x, axis=-1, eps=1e-5):
    m = x.mean(dim=axis, keepdim=True)
    v = x.var(dim=axis, keepdim=True, unbiased=False)
    return (x - m) / torch.sqrt(v + eps)
def _scatter_add(tgt, idx, src, axis=0):
    return tgt.clone().index_add_(axis, idx, src)
def _segment_sum(src, seg, n):
    out = torch.zeros((n,) + src.shape[1:], dtype=src.dtype)
    return out.index_add_(0, seg, src)
def _pad(x, pw):
    flat = tuple(v for pair in reversed(pw) for v in pair)
    return torch.nn.functional.pad(x, flat)

kernel_name = 'interleave_layers__sliding_block__glu_gated_geglu__prompt'

def setup_inputs():

    _w = (lambda a: (lambda t: t.to(torch.bfloat16) if t.is_floating_point() else t)(torch.as_tensor(a)))
    def _A_setup():
        B, S, D = 1, 2048, 576
        return {
            "x": _w((lambda *s: torch.randn(*s, dtype=torch.bfloat16) * 0.05)(B, S, D)),
            "wqkv": _w((lambda *s: torch.randn(*s, dtype=torch.bfloat16) * 0.05)(D, 3 * D)),
            "wo": _w((lambda *s: torch.randn(*s, dtype=torch.bfloat16) * 0.05)(D, D)),
        }
    _A_in = _A_setup()

    def _B_setup():
        B, S, Dm, Df = 1, 2048, 576, 4608
        return {
            "x": _w((lambda *s: torch.randn(*s, dtype=torch.bfloat16) * 0.05)(B, S, Dm)),
            "w_gate": _w((lambda *s: torch.randn(*s, dtype=torch.bfloat16) * 0.8)(Dm, Df) * (Dm ** -0.5)),
            "w_up": _w((lambda *s: torch.randn(*s, dtype=torch.bfloat16) * 0.8)(Dm, Df) * (Dm ** -0.5)),
            "w_down": _w((lambda *s: torch.randn(*s, dtype=torch.bfloat16) * 0.8)(Df, Dm) * (Df ** -0.5)),
        }
    _B_in = _B_setup()

    return {
        "A_x": _A_in["x"],
        "A_wqkv": _A_in["wqkv"],
        "A_wo": _A_in["wo"],
        "B_x": _B_in["x"],
        "B_w_gate": _B_in["w_gate"],
        "B_w_up": _B_in["w_up"],
        "B_w_down": _B_in["w_down"],
    }

def reference(A_x, A_wqkv, A_wo, B_x, B_w_gate, B_w_up, B_w_down):
    def _A_ref(x, wqkv, wo):
        B, S, D = x.shape
        H = 32; Dh = D // H; W = 256
        qkv = (lambda x, *d: x.permute(*d))((x @ wqkv).reshape(B, S, 3, H, Dh), 2, 0, 3, 1, 4)
        q, k, v = qkv[0], qkv[1], qkv[2]
        scores = torch.einsum("bhqd,bhkd->bhqk", q, k) * (Dh ** -0.5)
        idx = torch.arange(S)
        mask = (idx[:, None] - idx[None, :] >= 0) & (idx[:, None] - idx[None, :] < W)
        scores = torch.where(mask[None, None], scores, -1e9)
        p = _softmax(scores, axis=-1)
        o = torch.einsum("bhqk,bhkd->bhqd", p, v)
        return (lambda x, *d: x.permute(*d))(o, 0, 2, 1, 3).reshape(B, S, D) @ wo

    def _B_ref(x, w_gate, w_up, w_down):
        g = torch.einsum("bsd,df->bsf", x, w_gate)
        u = torch.einsum("bsd,df->bsf", x, w_up)
        h = _gelu(g) * u
        return torch.einsum("bsf,fd->bsd", h, w_down)

    x = A_x
    x = x + _A_ref(_layernorm(x, axis=-1), A_wqkv, A_wo)
    x = x + _B_ref(_layernorm(x, axis=-1), B_w_gate, B_w_up, B_w_down)
    x = x + _A_ref(_layernorm(x, axis=-1), A_wqkv, A_wo)
    x = x + _B_ref(_layernorm(x, axis=-1), B_w_gate, B_w_up, B_w_down)
    return x
```

```python
import sys
S,D,H,DH,W,DF = 2048,576,32,18,256,4608
out=[]
def e(s): out.append(s)
launches=[]
kds=[]
def kbegin(name):
    e(f".globl {name}\n.p2align 8\n.type {name},@function\n{name}:")
def kend(name, vg=64, sg=64):
    e("  s_endpgm")
    kds.append(f""".p2align 6
.amdhsa_kernel {name}
  .amdhsa_next_free_vgpr {vg}
  .amdhsa_next_free_sgpr {sg}
  .amdhsa_accum_offset {vg}
  .amdhsa_group_segment_fixed_size 0
  .amdhsa_kernarg_size 80
  .amdhsa_user_sgpr_count 2
  .amdhsa_user_sgpr_kernarg_segment_ptr 1
  .amdhsa_system_sgpr_workgroup_id_x 1
.end_amdhsa_kernel""")
BUF = dict(x0=(0,0,S*D*2), wqkv=(8,0,D*3*D*2), wo=(16,0,D*D*2), wg=(32,0,D*DF*2), wu=(40,0,D*DF*2), wd=(48,0,DF*D*2),
  out=(56,0,S*D*2), xn=(72,0,S*D*2), qkv=(72,4<<20,S*3*D*2), o=(72,12<<20,S*D*2), x1=(72,16<<20,S*D*2), h=(72,20<<20,S*DF*2),
  x2=(72,40<<20,S*D*2), x3=(72,44<<20,S*D*2))
def srd(sreg, buf):
    ka,off,sz = BUF[buf]
    e(f"  s_load_dwordx2 s[{sreg}:{sreg+1}], s[0:1], {ka}")
    e(f"  s_waitcnt lgkmcnt(0)")
    if off:
        e(f"  s_add_u32 s{sreg}, s{sreg}, {off}")
        e(f"  s_addc_u32 s{sreg+1}, s{sreg+1}, 0")
    e(f"  s_mov_b32 s{sreg+2}, {sz}")
    e(f"  s_mov_b32 s{sreg+3}, 0x00020000")
def wave_sum(v, t):
    for m in (1,2,4,8,16):
        e(f"  ds_swizzle_b32 v{t}, v{v} offset:{(m<<10)|0x1f}")
        e("  s_waitcnt lgkmcnt(0)")
        e(f"  v_add_f32 v{v}, v{v}, v{t}")
    e(f"  v_mov_b32 v{t}, v{v}")
    e("  s_nop 1")
    e(f"  v_permlane32_swap_b32 v{t}, v{v}")
    e("  s_nop 1")
    e(f"  v_add_f32 v{v}, v{v}, v{t}")
def ln(name, src, dst):
    kbegin(name)
    e(f"  s_cmp_ge_u32 s2, {S}\n  s_cbranch_scc1 {name}_end")
    srd(4,src); srd(8,dst)
    e(f"  s_mul_i32 s12, s2, {D*2}")
    e("  v_lshlrev_b32 v1, 1, v0")
    for j in range(9):
        e(f"  buffer_load_ushort v{10+j}, v1, s[4:7], s12 offen offset:{j*128}")
    e("  s_waitcnt vmcnt(0)")
    e("  v_mov_b32 v2, 0")
    for j in range(9):
        e(f"  v_lshlrev_b32 v{10+j}, 16, v{10+j}")
        e(f"  v_add_f32 v2, v2, v{10+j}")
    wave_sum(2,3)
    e(f"  v_mul_f32 v2, {1.0/D!r}, v2")
    e("  v_mov_b32 v4, 0")
    for j in range(9):
        e(f"  v_sub_f32 v{10+j}, v{10+j}, v2")
        e(f"  v_fmac_f32 v4, v{10+j}, v{10+j}")
    wave_sum(4,3)
    e(f"  v_mul_f32 v4, {1.0/D!r}, v4")
    e("  v_add_f32 v4, 1e-5, v4")
    e("  v_rsq_f32 v4, v4\n  s_nop 1")
    for j in range(9):
        e(f"  v_mul_f32 v{10+j}, v{10+j}, v4")
        e(f"  v_cvt_pk_bf16_f32 v{10+j}, v{10+j}, v{10+j}")
        e(f"  buffer_store_short v{10+j}, v1, s[8:11], s12 offen offset:{j*128}")
    e(f"{name}_end:")
    kend(name)
    return (name,S,64)
def gemm(name, A, B, C, K, N, B2=None, R=None):
    NB=N//64; nwg=(S//4)*NB
    kbegin(name)
    e(f"  s_cmp_ge_u32 s2, {nwg}\n  s_cbranch_scc1 {name}_end")
    srd(4,A); srd(8,B); srd(12,C)
    if B2: srd(16,B2)
    if R: srd(20,R)
    magic=-(-(1<<32)//NB)
    e(f"  s_mov_b32 s24, {magic}\n  s_mul_hi_u32 s25, s2, s24\n  s_mul_i32 s26, s25, {NB}\n  s_sub_u32 s26, s2, s26")
    e(f"  s_mul_i32 s27, s25, {4*K*2}")
    e(f"  s_lshl_b32 s28, s26, 7")
    e("  v_lshlrev_b32 v1, 1, v0\n  v_add_u32 v1, s28, v1")
    e("  v_mov_b32 v2, 0")
    for i in range(8): e(f"  v_mov_b32 v{40+i}, 0")
    e(f"  s_mov_b32 s29, 0\n  v_mov_b32 v3, v1")
    e(f"{name}_loop:")
    for r in range(4):
        e(f"  s_add_u32 s30, s27, {r*K*2}")
        e(f"  buffer_load_dword v{10+r}, v2, s[4:7], s30 offen")
    e(f"  s_mov_b32 s31, {N*2}")
    e(f"  buffer_load_ushort v20, v3, s[8:11], 0 offen")
    e(f"  buffer_load_ushort v21, v3, s[8:11], s31 offen")
    if B2:
        e(f"  buffer_load_ushort v22, v3, s[16:19], 0 offen")
        e(f"  buffer_load_ushort v23, v3, s[16:19], s31 offen")
    e("  s_waitcnt vmcnt(0)")
    for j in range(4 if B2 else 2): e(f"  v_lshlrev_b32 v{20+j}, 16, v{20+j}")
    for r in range(4):
        e(f"  v_lshlrev_b32 v30, 16, v{10+r}")
        e(f"  v_and_b32 v31, 0xffff0000, v{10+r}")
        e(f"  v_fmac_f32 v{40+r}, v30, v20\n  v_fmac_f32 v{40+r}, v31, v21")
        if B2: e(f"  v_fmac_f32 v{44+r}, v30, v22\n  v_fmac_f32 v{44+r}, v31, v23")
    e(f"  v_add_u32 v2, 4, v2\n  v_add_u32 v3, {N*4}, v3")
    e(f"  s_add_u32 s29, s29, 2\n  s_cmp_lt_u32 s29, {K}\n  s_cbranch_scc1 {name}_loop")
    e(f"  s_mul_i32 s27, s25, {4*N*2}")
    import math
    c1=-2*math.sqrt(2/math.pi)*math.log2(math.e); c2=c1*0.044715
    for r in range(4):
        e(f"  s_add_u32 s30, s27, {r*N*2}")
        a=40+r
        if B2:
            e(f"  v_mul_f32 v30, v{a}, v{a}\n  v_mov_b32 v31, {c1!r}\n  v_fmac_f32 v31, {c2!r}, v30\n  v_mul_f32 v31, v31, v{a}")
            e(f"  v_exp_f32 v31, v31\n  s_nop 1\n  v_add_f32 v31, 1.0, v31\n  v_rcp_f32 v31, v31\n  s_nop 1")
            e(f"  v_mul_f32 v{a}, v{a}, v31\n  v_mul_f32 v{a}, v{a}, v{44+r}")
        if R:
            e(f"  buffer_load_ushort v30, v1, s[20:23], s30 offen\n  s_waitcnt vmcnt(0)\n  v_lshlrev_b32 v30, 16, v30\n  v_add_f32 v{a}, v{a}, v30")
        e(f"  v_cvt_pk_bf16_f32 v{a}, v{a}, v{a}")
        e(f"  buffer_store_short v{a}, v1, s[12:15], s30 offen")
    e(f"{name}_end:")
    kend(name)
    return (name,nwg,64)
def attn(name):
    import math
    nwg=H*S//64
    kbegin(name)
    e(f"  s_cmp_ge_u32 s2, {nwg}\n  s_cbranch_scc1 {name}_end")
    srd(4,'qkv'); srd(8,'o')
    e("  s_and_b32 s12, s2, 31\n  s_lshr_b32 s13, s2, 5\n  s_lshl_b32 s13, s13, 6")
    e("  v_add_u32 v1, s13, v0")
    e(f"  s_mul_i32 s14, s12, {DH*2}")
    e(f"  s_mov_b32 s15, {3*D*2}\n  v_mul_lo_u32 v2, v1, s15\n  v_add_u32 v2, s14, v2")
    for j in range(9): e(f"  buffer_load_dword v{10+j}, v2, s[4:7], 0 offen offset:{4*j}")
    e("  s_waitcnt vmcnt(0)")
    sc=DH**-0.5*math.log2(math.e)
    for j in range(9):
        e(f"  v_and_b32 v{21+2*j}, 0xffff0000, v{10+j}\n  v_lshlrev_b32 v{20+2*j}, 16, v{10+j}")
    for j in range(18): e(f"  v_mul_f32 v{20+j}, {sc!r}, v{20+j}")
    e("  v_mov_b32 v3, 0xff800000\n  v_mov_b32 v4, 0")
    for j in range(18): e(f"  v_mov_b32 v{40+j}, 0")
    e("  s_mov_b32 s16, 0\n  s_mov_b64 s[18:19], exec")
    e(f"{name}_loop:")
    e("  v_cmp_le_u32 vcc, s16, v1\n  s_and_b64 exec, exec, vcc\n  s_cbranch_execz "+name+"_done")
    for j in range(9): e(f"  buffer_load_dword v{10+j}, v2, s[4:7], 0 offen offset:{D*2+4*j}")
    for j in range(9): e(f"  buffer_load_dword v{60+j}, v2, s[4:7], 0 offen offset:{2*D*2+4*j}")
    e("  s_waitcnt vmcnt(0)\n  v_mov_b32 v5, 0")
    for j in range(9):
        e(f"  v_lshlrev_b32 v6, 16, v{10+j}\n  v_and_b32 v7, 0xffff0000, v{10+j}\n  v_fmac_f32 v5, v6, v{20+2*j}\n  v_fmac_f32 v5, v7, v{21+2*j}")
    e("  v_max_f32 v6, v3, v5\n  v_sub_f32 v7, v3, v6\n  v_exp_f32 v7, v7\n  v_sub_f32 v8, v5, v6\n  v_exp_f32 v8, v8\n  v_mov_b32 v3, v6\n  s_nop 1")
    e("  v_fma_f32 v4, v4, v7, v8")
    for j in range(9):
        e(f"  v_lshlrev_b32 v6, 16, v{60+j}\n  v_and_b32 v9, 0xffff0000, v{60+j}")
        e(f"  v_mul_f32 v{40+2*j}, v{40+2*j}, v7\n  v_fmac_f32 v{40+2*j}, v6, v8\n  v_mul_f32 v{41+2*j}, v{41+2*j}, v7\n  v_fmac_f32 v{41+2*j}, v9, v8")
    e(f"  v_subrev_u32 v2, s15, v2")
    e(f"  s_add_u32 s16, s16, 1\n  s_cmp_lt_u32 s16, {W}\n  s_cbranch_scc1 {name}_loop")
    e(f"{name}_done:")
    e("  s_mov_b64 exec, s[18:19]")
    e("  v_rcp_f32 v4, v4\n  s_nop 1")
    e(f"  s_mov_b32 s15, {D*2}\n  v_mul_lo_u32 v2, v1, s15\n  v_add_u32 v2, s14, v2")
    for j in range(9):
        e(f"  v_mul_f32 v{40+2*j}, v{40+2*j}, v4\n  v_mul_f32 v{41+2*j}, v{41+2*j}, v4\n  v_cvt_pk_bf16_f32 v{10+j}, v{40+2*j}, v{41+2*j}")
        e(f"  buffer_store_dword v{10+j}, v2, s[8:11], 0 offen offset:{4*j}")
    e(f"{name}_end:")
    kend(name, vg=72)
    return (name,nwg,64)
def triv(name):
    kbegin(name); kend(name); return (name,256,256)
L=[]
a=ln('ln0_kernel','x0','xn'); q=gemm('qkv_kernel','xn','wqkv','qkv',D,3*D); at=attn('attn_kernel')
p1=gemm('op1_kernel','o','wo','x1',D,D,R='x0'); l1=ln('ln1_kernel','x1','xn'); gu=gemm('gu_kernel','xn','wg','h',D,DF,B2='wu')
d1=gemm('dn1_kernel','h','wd','x2',DF,D,R='x1'); l2=ln('ln2_kernel','x2','xn'); p2=gemm('op2_kernel','o','wo','x3',D,D,R='x2')
l3=ln('ln3_kernel','x3','xn'); d2=gemm('dn2_kernel','h','wd','out',DF,D,R='x3'); t=triv('triv_kernel')
ntriv=int(sys.argv[1]) if len(sys.argv)>1 else 0
L=[a,q,at,p1,l1,gu,d1,l2,q,at,p2,l3,gu,d2]+[t]*ntriv
hdr=["; naive"]+[f"; @launch kernel={n} grid=({g},1,1) block=({b},1,1) lds=0" for n,g,b in L]
print("\n".join(hdr)); print('.amdgcn_target "amdgcn-amd-amdhsa--gfx950"\n.text'); print("\n".join(out)); print('.section .rodata,"a"'); print("\n".join(kds))
```

```python
import sys
S,D,H,DH,W,DF = 2048,576,32,18,256,4608
out=[]
def e(s): out.append(s)
launches=[]
kds=[]
def kbegin(name):
    e(f".globl {name}\n.p2align 8\n.type {name},@function\n{name}:")
def kend(name, vg=64, sg=64):
    e("  s_endpgm")
    kds.append(f""".p2align 6
.amdhsa_kernel {name}
  .amdhsa_next_free_vgpr {vg}
  .amdhsa_next_free_sgpr {sg}
  .amdhsa_accum_offset {vg}
  .amdhsa_group_segment_fixed_size 0
  .amdhsa_kernarg_size 80
  .amdhsa_user_sgpr_count 2
  .amdhsa_user_sgpr_kernarg_segment_ptr 1
  .amdhsa_system_sgpr_workgroup_id_x 1
.end_amdhsa_kernel""")
BUF = dict(x0=(0,0,S*D*2), wqkv=(8,0,D*3*D*2), wo=(16,0,D*D*2), wg=(32,0,D*DF*2), wu=(40,0,D*DF*2), wd=(48,0,DF*D*2),
  out=(56,0,S*D*2), xn=(72,0,S*D*2), qkv=(72,4<<20,S*3*D*2), o=(72,12<<20,S*D*2), x1=(72,16<<20,S*D*2), h=(72,20<<20,S*DF*2),
  x2=(72,40<<20,S*D*2), x3=(72,44<<20,S*D*2))
def srd(sreg, buf):
    ka,off,sz = BUF[buf]
    e(f"  s_load_dwordx2 s[{sreg}:{sreg+1}], s[0:1], {ka}")
    e(f"  s_waitcnt lgkmcnt(0)")
    if off:
        e(f"  s_add_u32 s{sreg}, s{sreg}, {off}")
        e(f"  s_addc_u32 s{sreg+1}, s{sreg+1}, 0")
    e(f"  s_mov_b32 s{sreg+2}, {sz}")
    e(f"  s_mov_b32 s{sreg+3}, 0x00020000")
def wave_sum(v, t):
    for m in (1,2,4,8,16):
        e(f"  ds_swizzle_b32 v{t}, v{v} offset:{(m<<10)|0x1f}")
        e("  s_waitcnt lgkmcnt(0)")
        e(f"  v_add_f32 v{v}, v{v}, v{t}")
    e(f"  v_mov_b32 v{t}, v{v}")
    e("  s_nop 1")
    e(f"  v_permlane32_swap_b32 v{t}, v{v}")
    e("  s_nop 1")
    e(f"  v_add_f32 v{v}, v{v}, v{t}")
def ln(name, src, dst):
    kbegin(name)
    e(f"  s_cmp_ge_u32 s2, {S}\n  s_cbranch_scc1 {name}_end")
    srd(4,src); srd(8,dst)
    e(f"  s_mul_i32 s12, s2, {D*2}")
    e("  v_lshlrev_b32 v1, 1, v0")
    for j in range(9):
        e(f"  buffer_load_ushort v{10+j}, v1, s[4:7], s12 offen offset:{j*128}")
    e("  s_waitcnt vmcnt(0)")
    e("  v_mov_b32 v2, 0")
    for j in range(9):
        e(f"  v_lshlrev_b32 v{10+j}, 16, v{10+j}")
        e(f"  v_add_f32 v2, v2, v{10+j}")
    wave_sum(2,3)
    e(f"  v_mul_f32 v2, {1.0/D!r}, v2")
    e("  v_mov_b32 v4, 0")
    for j in range(9):
        e(f"  v_sub_f32 v{10+j}, v{10+j}, v2")
        e(f"  v_fmac_f32 v4, v{10+j}, v{10+j}")
    wave_sum(4,3)
    e(f"  v_mul_f32 v4, {1.0/D!r}, v4")
    e("  v_add_f32 v4, 1e-5, v4")
    e("  v_rsq_f32 v4, v4\n  s_nop 1")
    for j in range(9):
        e(f"  v_mul_f32 v{10+j}, v{10+j}, v4")
        e(f"  v_cvt_pk_bf16_f32 v{10+j}, v{10+j}, v{10+j}")
        e(f"  buffer_store_short v{10+j}, v1, s[8:11], s12 offen offset:{j*128}")
    e(f"{name}_end:")
    kend(name)
    return (name,S,64)
import os
PERT=float(os.environ.get('PERT','0')); PALL=int(os.environ.get('PALL','1'))
def gemm(name, A, B, C, K, N, B2=None, R=None):
    NB=N//64; nwg=(S//4)*NB
    kbegin(name)
    e(f"  s_cmp_ge_u32 s2, {nwg}\n  s_cbranch_scc1 {name}_end")
    srd(4,A); srd(8,B); srd(12,C)
    if B2: srd(16,B2)
    if R: srd(20,R)
    magic=-(-(1<<32)//NB)
    e(f"  s_mov_b32 s24, {magic}\n  s_mul_hi_u32 s25, s2, s24\n  s_mul_i32 s26, s25, {NB}\n  s_sub_u32 s26, s2, s26")
    e(f"  s_mul_i32 s27, s25, {4*K*2}")
    e(f"  s_lshl_b32 s28, s26, 7")
    e("  v_lshlrev_b32 v1, 1, v0\n  v_add_u32 v1, s28, v1")
    e("  v_mov_b32 v2, 0")
    for i in range(8): e(f"  v_mov_b32 v{40+i}, 0")
    e(f"  s_mov_b32 s29, 0\n  v_mov_b32 v3, v1")
    e(f"{name}_loop:")
    for r in range(4):
        e(f"  s_add_u32 s30, s27, {r*K*2}")
        e(f"  buffer_load_dword v{10+r}, v2, s[4:7], s30 offen")
    e(f"  s_mov_b32 s31, {N*2}")
    e(f"  buffer_load_ushort v20, v3, s[8:11], 0 offen")
    e(f"  buffer_load_ushort v21, v3, s[8:11], s31 offen")
    if B2:
        e(f"  buffer_load_ushort v22, v3, s[16:19], 0 offen")
        e(f"  buffer_load_ushort v23, v3, s[16:19], s31 offen")
    e("  s_waitcnt vmcnt(0)")
    for j in range(4 if B2 else 2): e(f"  v_lshlrev_b32 v{20+j}, 16, v{20+j}")
    for r in range(4):
        e(f"  v_lshlrev_b32 v30, 16, v{10+r}")
        e(f"  v_and_b32 v31, 0xffff0000, v{10+r}")
        e(f"  v_fmac_f32 v{40+r}, v30, v20\n  v_fmac_f32 v{40+r}, v31, v21")
        if B2: e(f"  v_fmac_f32 v{44+r}, v30, v22\n  v_fmac_f32 v{44+r}, v31, v23")
    e(f"  v_add_u32 v2, 4, v2\n  v_add_u32 v3, {N*4}, v3")
    e(f"  s_add_u32 s29, s29, 2\n  s_cmp_lt_u32 s29, {K}\n  s_cbranch_scc1 {name}_loop")
    e(f"  s_mul_i32 s27, s25, {4*N*2}")
    import math
    c1=-2*math.sqrt(2/math.pi)*math.log2(math.e); c2=c1*0.044715
    for r in range(4):
        e(f"  s_add_u32 s30, s27, {r*N*2}")
        a=40+r
        if B2:
            e(f"  v_mul_f32 v30, v{a}, v{a}\n  v_mov_b32 v31, {c1!r}\n  v_fmac_f32 v31, {c2!r}, v30\n  v_mul_f32 v31, v31, v{a}")
            e(f"  v_exp_f32 v31, v31\n  s_nop 1\n  v_add_f32 v31, 1.0, v31\n  v_rcp_f32 v31, v31\n  s_nop 1")
            e(f"  v_mul_f32 v{a}, v{a}, v31\n  v_mul_f32 v{a}, v{a}, v{44+r}")
        if R:
            e(f"  buffer_load_ushort v30, v1, s[20:23], s30 offen\n  s_waitcnt vmcnt(0)\n  v_lshlrev_b32 v30, 16, v30\n  v_add_f32 v{a}, v{a}, v30")
        if C=='out' and PERT:
            if PALL: e(f"  v_add_f32 v{a}, {PERT!r}, v{a}")
            else:
                e(f"  s_cmp_eq_u32 s2, 3000\n  s_cselect_b32 s33, {PERT!r}, 0\n  v_add_f32 v{a}, s33, v{a}")
        e(f"  v_cvt_pk_bf16_f32 v{a}, v{a}, v{a}")
        e(f"  buffer_store_short v{a}, v1, s[12:15], s30 offen")
    e(f"{name}_end:")
    kend(name)
    return (name,nwg,64)
def attn(name):
    import math
    nwg=H*S//64
    kbegin(name)
    e(f"  s_cmp_ge_u32 s2, {nwg}\n  s_cbranch_scc1 {name}_end")
    srd(4,'qkv'); srd(8,'o')
    e("  s_and_b32 s12, s2, 31\n  s_lshr_b32 s13, s2, 5\n  s_lshl_b32 s13, s13, 6")
    e("  v_add_u32 v1, s13, v0")
    e(f"  s_mul_i32 s14, s12, {DH*2}")
    e(f"  s_mov_b32 s15, {3*D*2}\n  v_mul_lo_u32 v2, v1, s15\n  v_add_u32 v2, s14, v2")
    for j in range(9): e(f"  buffer_load_dword v{10+j}, v2, s[4:7], 0 offen offset:{4*j}")
    e("  s_waitcnt vmcnt(0)")
    sc=DH**-0.5*math.log2(math.e)
    for j in range(9):
        e(f"  v_and_b32 v{21+2*j}, 0xffff0000, v{10+j}\n  v_lshlrev_b32 v{20+2*j}, 16, v{10+j}")
    for j in range(18): e(f"  v_mul_f32 v{20+j}, {sc!r}, v{20+j}")
    e("  v_mov_b32 v3, 0xff800000\n  v_mov_b32 v4, 0")
    for j in range(18): e(f"  v_mov_b32 v{40+j}, 0")
    e("  s_mov_b32 s16, 0\n  s_mov_b64 s[18:19], exec")
    e(f"{name}_loop:")
    e("  v_cmp_le_u32 vcc, s16, v1\n  s_and_b64 exec, exec, vcc\n  s_cbranch_execz "+name+"_done")
    for j in range(9): e(f"  buffer_load_dword v{10+j}, v2, s[4:7], 0 offen offset:{D*2+4*j}")
    for j in range(9): e(f"  buffer_load_dword v{60+j}, v2, s[4:7], 0 offen offset:{2*D*2+4*j}")
    e("  s_waitcnt vmcnt(0)\n  v_mov_b32 v5, 0")
    for j in range(9):
        e(f"  v_lshlrev_b32 v6, 16, v{10+j}\n  v_and_b32 v7, 0xffff0000, v{10+j}\n  v_fmac_f32 v5, v6, v{20+2*j}\n  v_fmac_f32 v5, v7, v{21+2*j}")
    e("  v_max_f32 v6, v3, v5\n  v_sub_f32 v7, v3, v6\n  v_exp_f32 v7, v7\n  v_sub_f32 v8, v5, v6\n  v_exp_f32 v8, v8\n  v_mov_b32 v3, v6\n  s_nop 1")
    e("  v_fma_f32 v4, v4, v7, v8")
    for j in range(9):
        e(f"  v_lshlrev_b32 v6, 16, v{60+j}\n  v_and_b32 v9, 0xffff0000, v{60+j}")
        e(f"  v_mul_f32 v{40+2*j}, v{40+2*j}, v7\n  v_fmac_f32 v{40+2*j}, v6, v8\n  v_mul_f32 v{41+2*j}, v{41+2*j}, v7\n  v_fmac_f32 v{41+2*j}, v9, v8")
    e(f"  v_subrev_u32 v2, s15, v2")
    e(f"  s_add_u32 s16, s16, 1\n  s_cmp_lt_u32 s16, {W}\n  s_cbranch_scc1 {name}_loop")
    e(f"{name}_done:")
    e("  s_mov_b64 exec, s[18:19]")
    e("  v_rcp_f32 v4, v4\n  s_nop 1")
    e(f"  s_mov_b32 s15, {D*2}\n  v_mul_lo_u32 v2, v1, s15\n  v_add_u32 v2, s14, v2")
    for j in range(9):
        e(f"  v_mul_f32 v{40+2*j}, v{40+2*j}, v4\n  v_mul_f32 v{41+2*j}, v{41+2*j}, v4\n  v_cvt_pk_bf16_f32 v{10+j}, v{40+2*j}, v{41+2*j}")
        e(f"  buffer_store_dword v{10+j}, v2, s[8:11], 0 offen offset:{4*j}")
    e(f"{name}_end:")
    kend(name, vg=72)
    return (name,nwg,64)
def triv(name):
    kbegin(name); kend(name); return (name,256,256)
L=[]
a=ln('ln0_kernel','x0','xn'); q=gemm('qkv_kernel','xn','wqkv','qkv',D,3*D); at=attn('attn_kernel')
p1=gemm('op1_kernel','o','wo','x1',D,D,R='x0'); l1=ln('ln1_kernel','x1','xn'); gu=gemm('gu_kernel','xn','wg','h',D,DF,B2='wu')
d1=gemm('dn1_kernel','h','wd','x2',DF,D,R='x1'); l2=ln('ln2_kernel','x2','xn'); p2=gemm('op2_kernel','o','wo','x3',D,D,R='x2')
l3=ln('ln3_kernel','x3','xn'); d2=gemm('dn2_kernel','h','wd','out',DF,D,R='x3'); t=triv('triv_kernel')
ntriv=int(sys.argv[1]) if len(sys.argv)>1 else 0
L=[a,q,at,p1,l1,gu,d1,l2,q,at,p2,l3,gu,d2]+[t]*ntriv
hdr=["; naive"]+[f"; @launch kernel={n} grid=({g},1,1) block=({b},1,1) lds=0" for n,g,b in L]
print("\n".join(hdr)); print('.amdgcn_target "amdgcn-amd-amdhsa--gfx950"\n.text'); print("\n".join(out)); print('.section .rodata,"a"'); print("\n".join(kds))
```

```python
import re
TRANS=('v_exp_f32','v_log_f32','v_rcp_f32','v_rsq_f32','v_sqrt_f32','v_sin_f32','v_cos_f32')
def regs(op):
    op=op.strip()
    if op.startswith('-'): op=op[1:]
    m=re.fullmatch(r'abs\((.*)\)',op)
    if m: op=m.group(1)
    m=re.fullmatch(r'\|(.*)\|',op)
    if m: op=m.group(1)
    m=re.fullmatch(r'([vas])(\d+)',op)
    if m: return [op]
    m=re.fullmatch(r'([vas])\[(\d+):(\d+)\]',op)
    if m: return [f"{m.group(1)}{i}" for i in range(int(m.group(2)),int(m.group(3))+1)]
    if op in('vcc','exec','m0','scc'): return [op]
    if op in('vcc_lo','vcc_hi'): return ['vcc']
    if op in('exec_lo','exec_hi'): return ['exec']
    return []
class Ins:
    def __init__(s,text):
        s.text=text; t=text.split(';')[0].strip()
        parts=t.split(None,1); s.op=parts[0]; rest=parts[1] if len(parts)>1 else ''
        ops=[o.strip() for o in re.split(r',(?![^\[]*\])',rest)] if rest else []
        if ops:
            last=ops[-1].split(); s.mods=' '.join(last[1:]); ops[-1]=last[0] if last else ''
        else: s.mods=''
        s.ops=ops; op=s.op
        for suf in('_e32','_e64','_dpp','_sdwa'):
            if op.endswith(suf): op=op[:-len(suf)]
        s.base=op
        s.dpp=s.op.endswith('_dpp')
        s.mfma=op.startswith('v_mfma'); s.valu=op.startswith('v_') and not s.mfma
        s.trans=op in TRANS; s.ds=op.startswith('ds_'); s.vmem=op.startswith(('buffer_','global_','flat_'))
        s.salu=op.startswith('s_'); s.W=[]; s.R=[]; s.states=1
        s.ldsdma = s.vmem and (' lds' in ' '+s.mods or 'load_lds' in op)
        if op=='s_nop': s.states=int(ops[0],0)+1
        if s.mfma:
            s.D=regs(ops[0]); s.A=regs(ops[1]); s.B=regs(ops[2]); s.C=regs(ops[3]); s.W=s.D; s.R=s.A+s.B+s.C
            s.passes = 8 if '32x32' in op else 4
        elif s.valu:
            if op.startswith('v_cmp'): s.W=regs(ops[0]); s.R=sum((regs(o) for o in ops[1:]),[])
            elif 'permlane' in op and 'swap' in op: s.W=regs(ops[0])+regs(ops[1]); s.R=list(s.W)
            elif op in('v_add_co_u32','v_sub_co_u32','v_addc_co_u32','v_subb_co_u32'):
                s.W=regs(ops[0])+regs(ops[1]); s.R=sum((regs(o) for o in ops[2:]),[])
            else:
                s.W=regs(ops[0]); s.R=sum((regs(o) for o in ops[1:]),[])
                if op in('v_fmac_f32','v_dot2c_f32_bf16','v_pk_fmac_f16') or s.dpp or s.op.endswith('_sdwa'): s.R+=s.W
        elif s.ds:
            if 'read' in op or 'permute' in op or 'swizzle' in op: s.W=regs(ops[0]); s.R=sum((regs(o) for o in ops[1:]),[])
            else: s.R=sum((regs(o) for o in ops),[])
        elif s.vmem:
            if 'load' in op and not s.ldsdma: s.W=regs(ops[0]); s.R=sum((regs(o) for o in ops[1:]),[])
            else: s.R=sum((regs(o) for o in ops),[])
            if s.ldsdma: s.R+=['m0']
            s.wide = 'store' in op and ('x3' in op or 'x4' in op)
            if s.wide: s.data=regs(ops[0]) if op.startswith('buffer') else regs(ops[1])
        elif s.salu:
            if op.startswith(('s_cmp','s_cbranch','s_branch','s_waitcnt','s_barrier','s_nop','s_endpgm','s_setprio','s_sleep')): s.R=sum((regs(o) for o in ops),[])
            else:
                s.W=regs(ops[0]); s.R=sum((regs(o) for o in ops[1:]),[])
                if 'saveexec' in op: s.W+=['exec']
def check_hazards(lines,name=''):
    ins=[]
    for l in lines:
        t=l.split(';')[0].strip()
        if not t or t.endswith(':') or t.startswith('.'): continue
        ins.append(Ins(t))
    errs=[]
    for j,c in enumerate(ins):
        dist=0
        for i in range(j-1,max(-1,j-24),-1):
            p=ins[i]; need=0; why=''
            def ov(a,b): return set(a)&set(b)
            pW=[r for r in p.W];
            if p.valu:
                vw=[r for r in pW if r[0] in 'va' and r!='vcc']; sw=[r for r in pW if r[0]=='s' or r=='vcc']
                if c.mfma and ov(vw,c.R): need,why=2,'valu->mfma'
                if p.trans and c.valu and not c.trans and ov(vw,c.R): need,why=max(need,1),'trans->valu'
                if c.valu and ('permlane' in c.base or c.dpp) and ov(vw,c.R): need,why=2,'valu->permlane/dpp'
                if c.valu and c.base in('v_readfirstlane_b32','v_readlane_b32') and ov(vw,c.R): need,why=max(need,1),'valu->readlane'
                if c.valu and ov(sw,c.R): need,why=max(need,2),'valu sgpr->valu'
                if c.vmem and ov(sw,c.R): need,why=5,'valu sgpr->vmem'
                if c.salu and ov(sw,c.R): need,why=max(need,1),'valu sgpr->salu(pad)'
                if 'exec' in pW: need,why=5,'valu exec'
                if p.base.startswith('v_dot') and (c.valu or c.mfma or c.vmem or c.ds) and ov(vw,c.R+c.W):
                    same = c.base==p.base
                    srcab = sum((regs(o) for o in (c.ops[1:3])),[]) if same else []
                    if not same or ov(vw,srcab): need,why=max(need,3),'dot->other'
                if ('op_sel' in p.mods or p.op.endswith('_sdwa')) and c.valu and ov(vw,c.R): need,why=max(need,1),'opsel'
            if p.mfma:
                big={8:12,4:8}[p.passes]; mid={8:10,4:6}[p.passes]; war={8:7,4:3}[p.passes]
                if c.mfma:
                    if ov(p.D,c.A+c.B): need,why=big,'mfma D->mfma AB'
                    elif ov(p.D,c.C) and not (p.D==c.C and p.passes==c.passes): need,why=mid,'mfma D->mfma C partial'
                elif (c.valu or c.ds or c.vmem) and ov(p.D,c.R+c.W): need,why=big,'mfma D->valu/mem'
                if c.valu and ov(p.C,c.W): need,why=max(need,war),'mfma C WAR'
            if p.salu and 'm0' in pW and c.vmem and c.ldsdma: need,why=1,'m0->ldsdma'
            if p.vmem and getattr(p,'wide',False) and ov(p.data,c.W): need,why=2,'store data WAR'
            if need>dist: errs.append(f"{name}: hazard {why}: need {need} have {dist}\n    {p.text}\n    {c.text}")
            dist+=p.states
            if dist>=20: break
    return errs
import os
PROF=int(os.environ.get('PROF','0'))
PROF_OFF=0x5800000
class E:
    def __init__(s): s.L=[]; s.vi=0; s.vd=0; s.di=0; s.dd=0; s.nst=0
    def stamp(s,k):
        if PROF: s(f"s_memtime s[{68+2*k}:{69+2*k}]"); s.nst=max(s.nst,k+1)
    def __call__(s,t): s.L.append('  '+t)
    def label(s,l): s.L.append(l+':')
    def vm(s,t):
        if s.vi-s.vd>=62: s.wait(vm=s.vi-61)
        s(t); s.vi+=1; return s.vi
    def ds(s,t):
        if s.di-s.dd>=15: s.wait(ds=s.di-14)
        s(t); s.di+=1; return s.di
    def wait(s,vm=None,ds=None):
        p=[]
        if vm is not None and vm>s.vd:
            n=s.vi-vm; assert 0<=n<=63; p.append(f"vmcnt({n})"); s.vd=vm
        if ds is not None and ds>s.dd:
            n=s.di-ds; assert 0<=n<=15; p.append(f"lgkmcnt({n})"); s.dd=ds
        if p: s("s_waitcnt "+' '.join(p))
        return bool(p)
    def waitall(s): s.wait(vm=s.vi,ds=s.di)
    def lgkm0(s): s("s_waitcnt lgkmcnt(0)"); s.dd=s.di
    def nop(s,n): s(f"s_nop {n-1}")
class Module:
    def __init__(s): s.code=[]; s.kds=[]; s.launches=[]; s.errs=[]
    def add(s,name,e,vg,ag=0,sg=96):
        s.errs+=check_hazards(e.L,name)
        s.code.append(f".globl {name}\n.p2align 8\n.type {name},@function\n{name}:")
        if PROF:
            L=list(e.L); assert L[1].strip().startswith('s_cbranch_scc1'); L[1]=f"  s_cbranch_scc1 {name}_exit"
            L[2:2]=["  s_memrealtime s[64:65]","  s_memtime s[66:67]"]+[f"  s_mov_b32 s{68+2*k}, 0" for k in range(12)]
            p=E(); p("s_waitcnt vmcnt(0) lgkmcnt(0)"); p("s_memrealtime s[92:93]"); p("s_memtime s[94:95]")
            p("s_load_dwordx4 s[96:99], s[0:1], 64"); p("s_waitcnt lgkmcnt(0)")
            p("s_lshr_b32 s65, s96, 9"); p("s_and_b32 s65, s65, 31"); p("s_lshl_b32 s65, s65, 9"); p("s_add_u32 s65, s65, s2"); p("s_lshl_b32 s65, s65, 6")
            p(f"s_add_u32 s65, s65, {PROF_OFF}")
            p("s_mov_b32 s96, s98"); p("s_mov_b32 s97, s99"); p("s_mov_b32 s98, 0x10000000"); p("s_mov_b32 s99, 0x20000")
            p("v_mbcnt_lo_u32_b32 v1, -1, 0"); p("v_mbcnt_hi_u32_b32 v1, -1, v1"); p("v_lshrrev_b32 v0, 6, v0"); p("v_or_b32 v0, v0, v1")
            p("v_cmp_eq_u32 vcc, 0, v0"); p("s_and_b64 exec, exec, vcc"); p(f"s_cbranch_execz {name}_exit")
            p("v_mov_b32 v0, 0"); p("v_mov_b32 v2, s64"); p("v_mov_b32 v3, s92"); p("s_sub_u32 s94, s94, s66"); p("v_mov_b32 v4, s94"); p("s_getreg_b32 s93, hwreg(HW_REG_XCC_ID)"); p("v_mov_b32 v5, s93")
            p("buffer_store_dwordx4 v[2:5], v0, s[96:99], s65 offen")
            for q in range(3):
                for r in range(4):
                    k=4*q+r; p(f"s_sub_u32 s93, s{68+2*k}, s66"); p(f"s_cmp_eq_u32 s{68+2*k}, 0"); p("s_cselect_b32 s93, 0, s93"); p(f"v_mov_b32 v{6+4*q+r}, s93")
                p(f"buffer_store_dwordx4 v[{6+4*q}:{9+4*q}], v0, s[96:99], s65 offen offset:{16+16*q}")
            p.label(f"{name}_exit")
            e.L=L+p.L; sg=102
        s.code+=e.L; s.code.append("  s_endpgm")
        acc=(vg+3)//4*4; nfv=vg if ag==0 else acc+ag
        s.kds.append(f""".p2align 6
.amdhsa_kernel {name}
  .amdhsa_next_free_vgpr {nfv}
  .amdhsa_next_free_sgpr {sg}
  .amdhsa_accum_offset {acc}
  .amdhsa_group_segment_fixed_size 0
  .amdhsa_kernarg_size 80
  .amdhsa_user_sgpr_count 2
  .amdhsa_user_sgpr_kernarg_segment_ptr 1
  .amdhsa_system_sgpr_workgroup_id_x 1
.end_amdhsa_kernel""")
    def launch(s,name,grid,block,lds=0): s.launches.append(f"; @launch kernel={name} grid=({grid},1,1) block=({block},1,1) lds={lds}")
    def text(s,hdr):
        return hdr+"\n"+"\n".join(s.launches)+'\n.amdgcn_target "amdgcn-amd-amdhsa--gfx950"\n.text\n'+"\n".join(s.code)+'\n.section .rodata,"a"\n'+"\n".join(s.kds)+"\n"
def fl(x):
    import struct
    return "0x%08x"%struct.unpack('<I',struct.pack('<f',x))[0]
```

```python
from fw import *
from lay import *
from k_ln import *
LDSW=73728
def k0(mod):
    e=E(); N='prep_kernel'
    e("s_cmp_ge_u32 s2, 256"); e(f"s_cbranch_scc1 {N}_end")
    e("s_load_dwordx4 s[36:39], s[0:1], 0")
    e("s_load_dwordx2 s[40:41], s[0:1], 16")
    e("s_load_dwordx4 s[44:47], s[0:1], 32")
    e("s_load_dwordx2 s[48:49], s[0:1], 48")
    e("s_load_dwordx2 s[50:51], s[0:1], 72")
    e("v_and_b32 v1, 63, v0"); e("v_lshrrev_b32 v2, 6, v0"); e.nop(1)
    e("v_readfirstlane_b32 s20, v2")
    e("v_and_b32 v3, 7, v1"); e("v_lshrrev_b32 v4, 3, v1")
    e("v_mul_u32_u24 v5, 1152, v3"); e("v_lshl_add_u32 v5, v4, 4, v5")
    e("v_lshlrev_b32 v6, 9, v4"); e("v_lshl_add_u32 v6, v3, 4, v6")
    e("s_mov_b32 s21, 0x3f803f80")
    e.lgkm0()
    srd_ptr(e,16,36,XB)
    e("s_mov_b32 s12, s50"); e("s_mov_b32 s13, s51"); e(f"s_mov_b32 s14, {WSSIZE}"); e("s_mov_b32 s15, 0x20000")
    e("s_mul_i32 s22, s2, 9216"); e("s_mul_i32 s23, s20, 384"); e("s_add_u32 s22, s22, s23")
    e("s_cmp_eq_u32 s20, 3"); e(f"s_cselect_b32 s22, {XB}, s22")
    for i in range(3): tx=e.vm(f"buffer_load_dwordx4 v[{8+4*i}:{11+4*i}], v5, s[16:19], s22 offen offset:{128*i}")
    e("s_lshl_b32 s24, s20, 10")
    base=(e.vi,e.vd,e.di,e.dd)
    def rst(): e.vi,e.vd,e.di,e.dd=base
    e("s_cmp_lt_u32 s2, 144"); e(f"s_cbranch_scc1 {N}_ldG")
    e("s_cmp_lt_u32 s2, 252"); e(f"s_cbranch_scc1 {N}_ldR")
    srd_ws(e,8,50,'VT')
    e("s_cmp_eq_u32 s2, 252"); e(f"s_cbranch_scc1 {N}_zero")
    for r in range(4): e(f"v_mov_b32 v{24+r}, s21")
    e("s_sub_u32 s25, s2, 253"); e("s_lshl_b32 s25, s25, 2"); e("s_add_u32 s25, s25, s20"); e("s_mul_i32 s25, s25, 18")
    e("v_and_b32 v20, 31, v1"); e("v_mul_u32_u24 v20, 304, v20"); e("v_add_u32 v20, 288, v20")
    e("v_lshrrev_b32 v21, 5, v1"); e("v_mul_u32_u24 v21, 9728, v21"); e("v_add_u32 v20, v20, v21")
    e("s_mul_i32 s25, s25, 19456")
    for i in range(18):
        e.vm("buffer_store_dwordx4 v[24:27], v20, s[8:11], s25 offen sc1"); e("s_add_u32 s25, s25, 19456")
    e(f"s_branch {N}_ln")
    e.label(f"{N}_zero"); rst()
    for r in range(4): e(f"v_mov_b32 v{24+r}, 0")
    e("v_lshlrev_b32 v20, 4, v1")
    e("s_mul_i32 s25, s20, 36864"); e(f"s_add_u32 s25, s25, {WS['WQKV'][0]+(13*144+2)*1024}")
    for i in range(18):
        e.vm(f"buffer_store_dwordx4 v[24:27], v20, s[12:15], s25 offen sc1"); e(f"s_add_u32 s25, s25, {1024 if i%2==0 else 3072}")
    e(f"s_branch {N}_ln")
    e.label(f"{N}_ldG"); rst()
    e("s_cmp_ge_u32 s2, 72"); e("s_cselect_b32 s8, s46, s44"); e("s_cselect_b32 s9, s47, s45"); e("s_cselect_b32 s26, 72, 0")
    e("s_cselect_b32 s27, 1, 0")
    e(f"s_mov_b32 s10, {D*DF*2}"); e("s_mov_b32 s11, 0x20000")
    e("s_sub_u32 s26, s2, s26")
    e("v_mul_u32_u24 v20, 9216, v4"); e("v_lshl_add_u32 v20, v3, 4, v20")
    e("s_lshl_b32 s25, s26, 7"); e("s_mul_i32 s28, s20, 73728"); e("s_add_u32 s25, s25, s28")
    for i in range(18):
        e(f"s_add_u32 m0, s24, {4096*i}"); e.nop(1)
        tW=e.vm("buffer_load_dwordx4 v20, s[8:11], s25 offen lds"); e(f"s_add_u32 s25, s25, {4*73728}")
    e(f"s_branch {N}_ln")
    e.label(f"{N}_ldR"); rst()
    e("s_sub_u32 s26, s2, 144"); e("s_mov_b32 s27, 0")
    srd_ptr(e,8,48,DF*D*2); e("s_mov_b32 s28, 1152"); e("s_mul_i32 s25, s26, 73728")
    e("s_cmp_lt_u32 s2, 216"); e(f"s_cbranch_scc1 {N}_ldR2")
    e("s_sub_u32 s26, s2, 216"); e("s_mov_b32 s27, 1")
    srd_ptr(e,8,38,D*3*D*2); e("s_mov_b32 s28, 3456")
    e("s_mul_i32 s29, s26, 21846"); e("s_lshr_b32 s29, s29, 16")
    e("s_mul_i32 s30, s29, 3"); e("s_sub_u32 s30, s26, s30")
    e(f"s_mul_i32 s25, s29, {64*3456}"); e("s_mul_i32 s31, s30, 1152"); e("s_add_u32 s25, s25, s31")
    e("s_cmp_lt_u32 s2, 243"); e(f"s_cbranch_scc1 {N}_ldR2")
    e("s_sub_u32 s26, s2, 243"); e("s_mov_b32 s27, 2")
    srd_ptr(e,8,40,D*D*2); e("s_mov_b32 s28, 1152"); e("s_mov_b32 s25, 0")
    e.label(f"{N}_ldR2")
    e("v_and_b32 v20, 0xff, v0"); e("v_mul_u32_u24 v21, 911, v20"); e("v_lshrrev_b32 v21, 16, v21")
    e("v_mul_u32_u24 v22, 72, v21"); e("v_sub_u32 v22, v20, v22")
    e("s_lshl_b32 s31, s26, 6")
    e("s_cmp_eq_u32 s27, 2"); e(f"s_cbranch_scc1 {N}_ldWo")
    def adv():
        e("v_add_u32 v22, 40, v22"); e("v_cmp_le_u32 vcc, 72, v22"); e("v_add_u32 v21, 3, v21"); e("v_subrev_u32 v24, 72, v22")
        e("v_cndmask_b32 v22, v22, v24, vcc"); e("v_addc_co_u32 v21, vcc, 0, v21, vcc")
    for i in range(18):
        e("v_mul_lo_u32 v23, v21, s28"); e(f"s_add_u32 m0, s24, {4096*i}"); e("v_lshl_add_u32 v23, v22, 4, v23")
        e.vm("buffer_load_dwordx4 v23, s[8:11], s25 offen lds")
        if i<17: adv()
    e(f"s_branch {N}_ln")
    e.label(f"{N}_ldWo"); rst()
    for i in range(18):
        e("v_add_u32 v25, s31, v21")
        e("v_lshrrev_b32 v26, 4, v25"); e("v_mul_u32_u24 v26, 18, v26")
        e("v_and_b32 v27, 3, v25"); e("v_add_u32 v26, v26, v27")
        e("v_bfe_u32 v27, v25, 3, 1"); e("v_lshl_add_u32 v26, v27, 2, v26")
        e("v_bfe_u32 v27, v25, 2, 1"); e("v_lshl_add_u32 v26, v27, 3, v26")
        e("v_bfe_u32 v27, v25, 1, 5"); e("v_mul_u32_u24 v27, 18, v27"); e("v_and_b32 v28, 1, v25")
        e("v_cmp_le_u32 vcc, 512, v25"); e("v_add3_u32 v27, v27, v28, 16")
        e(f"s_add_u32 m0, s24, {4096*i}")
        e("v_cndmask_b32 v26, v26, v27, vcc")
        e("v_mul_u32_u24 v23, 1152, v26"); e("v_lshl_add_u32 v23, v22, 4, v23")
        e.vm("buffer_load_dwordx4 v23, s[8:11], 0 offen lds")
        if i<17: adv()
    e.label(f"{N}_ln")
    tW=e.vi
    e("s_lshl_b32 s29, s20, 6"); e(f"s_add_u32 s29, s29, {LDSW}")
    e("v_lshlrev_b32 v7, 3, v3"); e(f"v_add_u32 v30, {LDSW}, v7"); e("v_add_u32 v7, s29, v7")
    e.wait(vm=tx)
    ln_stats_write(e,8,28,29,31,7,21,None)
    e.lgkm0(); e("s_barrier")
    ln_finish(e,8,32,28,30,44)
    e("s_lshr_b32 s29, s2, 2"); e("s_mul_i32 s29, s29, 36864"); e("s_mul_i32 s33, s20, 12288"); e("s_add_u32 s29, s29, s33")
    e("s_and_b32 s33, s2, 3"); e("s_lshl_b32 s33, s33, 7"); e("s_add_u32 s29, s29, s33")
    e("s_cmp_eq_u32 s20, 3"); e(f"s_cbranch_scc1 {N}_lnskip")
    e(f"s_add_u32 s33, s29, {WS['X0'][0]}"); e(f"s_add_u32 s34, s29, {WS['XN'][0]}")
    for i in range(3):
        e(f"buffer_store_dwordx4 v[{8+4*i}:{11+4*i}], v6, s[12:15], s33 offen sc1")
        e(f"buffer_store_dwordx4 v[{32+4*i}:{35+4*i}], v6, s[12:15], s34 offen sc1")
        if i<2: e("s_add_u32 s33, s33, 4096"); e("s_add_u32 s34, s34, 4096")
    e("s_waitcnt vmcnt(6)"); e(f"s_branch {N}_ln2")
    e.label(f"{N}_lnskip"); e("s_waitcnt vmcnt(0)")
    e.label(f"{N}_ln2")
    e("s_barrier")
    e("s_cmp_ge_u32 s2, 252"); e(f"s_cbranch_scc1 {N}_end")
    e("v_lshrrev_b32 v20, 4, v1"); e("v_bfe_u32 v21, v1, 2, 2"); e("v_and_b32 v22, 3, v1")
    e("v_and_b32 v23, 1, v22"); e("v_lshrrev_b32 v24, 1, v22")
    e("v_lshlrev_b32 v25, 4, v23"); e("v_lshl_add_u32 v25, v24, 3, v25")
    e("v_lshlrev_b32 v31, 4, v1")
    e("s_cmp_ge_u32 s2, 144"); e(f"s_cbranch_scc1 {N}_pR")
    e.vi=e.vd=0; e.di=e.dd=0
    e("v_lshl_add_u32 v26, v20, 3, v21"); e("v_lshlrev_b32 v26, 7, v26"); e("v_add_u32 v26, v26, v25")
    e("s_lshl_b32 s29, s20, 5"); e("v_add_u32 v26, s29, v26"); e("v_add_u32 v27, 36864, v26")
    toks=[]
    for s_ in range(18):
        b=26 if s_<9 else 27; o=(s_%9)*4096
        e.ds(f"ds_read_b64_tr_b16 v[{48+4*s_}:{49+4*s_}], v{b} offset:{o}")
        toks.append(e.ds(f"ds_read_b64_tr_b16 v[{50+4*s_}:{51+4*s_}], v{b} offset:{o+512}"))
    e("s_lshl_b32 s29, s26, 2"); e("s_add_u32 s29, s29, s20"); e("s_mul_i32 s30, s29, 7282"); e("s_lshr_b32 s30, s30, 16")
    e("s_mul_i32 s31, s30, 9"); e("s_sub_u32 s31, s29, s31")
    e("s_mul_i32 s30, s30, 324"); e("s_mul_i32 s33, s31, 36")
    e("s_cmp_lt_u32 s31, 3"); e("s_cselect_b32 s33, s31, s33"); e("s_cselect_b32 s34, 3, 1"); e("s_lshl_b32 s34, s34, 10")
    e("s_add_u32 s30, s30, s33"); e("s_lshl_b32 s30, s30, 10"); e(f"s_add_u32 s30, s30, {WS['WGU'][0]}")
    e("s_lshl_b32 s33, s27, 8"); e("s_add_u32 s30, s30, s33")
    e("v_and_b32 v28, 15, v1"); e("v_lshlrev_b32 v28, 4, v28"); e("v_and_b32 v29, 1, v20"); e("v_lshl_add_u32 v28, v29, 9, v28")
    e("v_lshrrev_b32 v29, 1, v20"); e("v_mul_lo_u32 v29, v29, s34"); e("v_add_u32 v28, v28, v29")
    e("s_lshl_b32 s34, s34, 1")
    e("v_mov_b32 v40, 0"); e("v_mov_b32 v41, 0")
    for s_ in range(18):
        e.wait(ds=toks[s_])
        for r in range(4): e(f"v_dot2c_f32_bf16 v{40+(r&1)}, s21, v{48+4*s_+r}")
    e.nop(3)
    e("v_add_f32 v40, v40, v41"); e("v_mov_b32 v41, v40"); e.nop(2)
    e("v_permlane16_swap_b32 v41, v40"); e("v_add_f32 v40, v40, v41"); e("v_mov_b32 v41, v40"); e.nop(2)
    e("v_permlane32_swap_b32 v41, v40"); e("v_add_f32 v40, v40, v41")
    e(f"v_mul_f32 v40, {fl(-1.0/D)}, v40")
    e("s_mov_b32 s35, 0x00003f80"); e("s_mov_b32 s36, 0x3f800000")
    for s_ in range(18):
        for r in range(4):
            x=48+4*s_+r
            e(f"v_dot2_f32_bf16 v{42+2*(r&1)}, v{x}, s35, v40"); e(f"v_dot2_f32_bf16 v{43+2*(r&1)}, v{x}, s36, v40")
            if r&1:
                e.nop(2)
                e(f"v_cvt_pk_bf16_f32 v{x-1}, v42, v43"); e(f"v_cvt_pk_bf16_f32 v{x}, v44, v45")
        e(f"buffer_store_dwordx4 v[{48+4*s_}:{51+4*s_}], v28, s[12:15], s30 offen sc1"); e("s_add_u32 s30, s30, s34")
    e(f"s_branch {N}_end")
    e.label(f"{N}_pR"); e.vi=e.vd=0; e.di=e.dd=0
    e("s_cmp_eq_u32 s27, 0"); e(f"s_cbranch_scc1 {N}_pD")
    e("v_lshrrev_b32 v26, 1, v20"); e("v_lshl_add_u32 v26, v26, 3, v21"); e("s_lshl_b32 s29, s20, 4"); e("v_add_u32 v26, s29, v26")
    e("v_mul_u32_u24 v26, 1152, v26"); e("v_and_b32 v27, 1, v20")
    def rd_st(lst):
        toks=[]
        for n,(b,o,_) in enumerate(lst):
            e.ds(f"ds_read_b64_tr_b16 v[{48+4*n}:{49+4*n}], v{b} offset:{o}")
            toks.append(e.ds(f"ds_read_b64_tr_b16 v[{50+4*n}:{51+4*n}], v{b} offset:{o+4608}"))
        for n,(b,o,d) in enumerate(lst):
            e(f"s_add_u32 s33, s30, {d}"); e.wait(ds=toks[n])
            e(f"buffer_store_dwordx4 v[{48+4*n}:{51+4*n}], v31, s[12:15], s33 offen sc1")
    e("s_cmp_eq_u32 s27, 2"); e(f"s_cbranch_scc1 {N}_pWo")
    e("s_mul_i32 s29, s26, 21846"); e("s_lshr_b32 s29, s29, 16"); e("s_mul_i32 s34, s29, 3"); e("s_sub_u32 s34, s26, s34")
    e("s_lshl_b32 s29, s29, 2"); e("s_add_u32 s29, s29, s20"); e("s_lshl_b32 s30, s29, 12"); e(f"s_add_u32 s30, s30, {WS['WQKV'][0]}")
    def blk(g): return ((g>>2)*144+(g&3))*1024
    e("s_cmp_eq_u32 s34, 2"); e(f"s_cbranch_scc1 {N}_pV")
    e("v_mul_u32_u24 v28, 40, v27"); e("v_add3_u32 v28, v28, v25, v26")
    e("v_lshlrev_b32 v29, 2, v23"); e("v_lshl_add_u32 v29, v27, 1, v29"); e("v_add_u32 v29, v29, v24")
    e("v_mul_u32_u24 v29, 72, v29"); e("v_add3_u32 v29, v29, v26, 32")
    e("s_cmp_eq_u32 s34, 1"); e(f"s_cbranch_scc1 {N}_pK")
    st=(e.vi,e.vd,e.di,e.dd)
    rd_st([(28,72*B,blk(B)) for B in range(16)]+[(29,576*X,blk(16+X)) for X in range(2)]); e(f"s_branch {N}_end")
    e.label(f"{N}_pK"); e.vi,e.vd,e.di,e.dd=st
    rd_st([(28,72*B,blk(18+B)) for B in range(16)]+[(29,576*X,blk(34+X)) for X in range(2)]); e(f"s_branch {N}_end")
    e.label(f"{N}_pV"); e.vi,e.vd,e.di,e.dd=st
    e("v_lshlrev_b32 v28, 5, v27"); e("v_lshl_add_u32 v28, v22, 3, v28"); e("v_add_u32 v28, v28, v26")
    rd_st([(28,64*B,blk(36+B)) for B in range(18)]); e(f"s_branch {N}_end")
    e.label(f"{N}_pWo"); e.vi,e.vd,e.di,e.dd=st
    e("s_lshl_b32 s29, s26, 2"); e("s_add_u32 s29, s29, s20"); e("s_mul_i32 s30, s29, 3072"); e(f"s_add_u32 s30, s30, {WS['WO'][0]}")
    e("v_lshlrev_b32 v28, 5, v27"); e("v_add3_u32 v28, v28, v25, v26")
    rd_st([(28,64*B,((B//3)*108+B%3)*1024) for B in range(18)]); e(f"s_branch {N}_end")
    e.label(f"{N}_pD"); e.vi,e.vd,e.di,e.dd=st
    e("s_lshr_b32 s29, s20, 1"); e("s_lshl_b32 s33, s29, 5")
    e("v_lshl_add_u32 v26, v20, 3, v21"); e("v_add_u32 v26, s33, v26"); e("v_mul_u32_u24 v26, 1152, v26")
    e("s_and_b32 s34, s20, 1"); e("s_mul_i32 s33, s34, 576"); e("v_add_u32 v26, s33, v26")
    e("v_lshl_add_u32 v28, v22, 4, v26"); e("v_lshl_add_u32 v29, v22, 3, v26")
    e("s_lshl_b32 s33, s26, 1"); e("s_add_u32 s29, s29, s33")
    e("s_mul_i32 s33, s29, 1821"); e("s_lshr_b32 s33, s33, 16")
    e("s_mul_i32 s35, s33, 36"); e("s_sub_u32 s29, s29, s35")
    e("s_lshl_b32 s34, s34, 3"); e("s_add_u32 s33, s33, s34")
    e("s_mul_i32 s33, s33, 36"); e("s_add_u32 s29, s29, s33"); e("s_mul_i32 s30, s29, 9216"); e(f"s_add_u32 s30, s30, {WS['WD'][0]}")
    lst=[]
    for n2 in range(2):
        for j in range(9):
            if j<8: lst.append((28,(144*n2+32*(j>>1)+4*(j&1))*2,(n2*4*324+j)*1024))
            else: lst.append((29,(144*n2+128)*2,(n2*4*324+j)*1024))
    rd_st(lst)
    e.label(f"{N}_end")
    mod.add(N,e,vg=120,sg=64)
    return (N,256,256,LDSW+256)
```

```python
from fw import *
from lay import *
import math, os
QS=DH**-0.5*math.log2(math.e)
ACC=16; WF=80; TMP=112
def prologue_common(e,N,nwg):
    e(f"s_cmp_ge_u32 s2, {nwg}"); e(f"s_cbranch_scc1 {N}_end")
    e("s_load_dwordx2 s[4:5], s[0:1], 72")
    e("v_and_b32 v1, 63, v0"); e("v_lshrrev_b32 v2, 6, v0"); e("v_lshlrev_b32 v3, 4, v1")
    e("v_readfirstlane_b32 s20, v2")
    e("s_and_b32 s16, s2, 7"); e("s_lshr_b32 s17, s2, 3")
def k1(mod):
    e=E(); N='qkv_kernel'
    prologue_common(e,N,224)
    e("s_lshr_b32 s18, s16, 1"); e("s_lshl_b32 s18, s18, 2"); e("s_and_b32 s19, s17, 3"); e("s_add_u32 s18, s18, s19")
    e("s_and_b32 s19, s16, 1"); e("s_mul_i32 s19, s19, 7"); e("s_lshr_b32 s17, s17, 2"); e("s_add_u32 s19, s19, s17")
    e("s_lshl_b32 s18, s18, 2"); e("s_add_u32 s18, s18, s20")
    e(f"s_mul_i32 s21, s18, 36864"); e(f"s_add_u32 s21, s21, {WS['XN'][0]}")
    e(f"s_mul_i32 s22, s19, {144*1024}"); e("s_lshl_b32 s23, s20, 12"); e("s_add_u32 s22, s22, s23"); e(f"s_add_u32 s22, s22, {WS['WQKV'][0]}")
    e.lgkm0()
    srd_ptr(e,8,4,WSSIZE)
    tok={}
    def issue_ops(c):
        ops=[]
        def dma(j):
            def f():
                if j==0:
                    e(f"s_add_u32 m0, s23, {c*16384}")
                    if c: e("s_add_u32 s22, s22, 16384")
                    else: e.nop(1)
                e.vm(f"buffer_load_dwordx4 v3, s[8:11], s22 offen offset:{1024*j} lds")
            return f
        def xl(j):
            def f():
                k=4*c+j; tok[c]=e.vm(f"buffer_load_dwordx4 a[{4*k}:{4*k+3}], v3, s[8:11], s21 offen offset:{1024*j}")
                if j==3: e("s_add_u32 s21, s21, 4096")
            return f
        return [dma(j) for j in range(4)]+[xl(j) for j in range(4)]
    PRE=int(os.environ.get('K1PRE','2'))
    for c in range(PRE):
        for f in issue_ops(c): f()
    e("v_add_u32 v4, 0x10000, v3"); e("v_add_u32 v5, 0x20000, v3")
    e("s_cmp_ge_u32 s19, 9"); e(f"s_cbranch_scc1 {N}_v")
    st=(e.vi,e.vd,e.di,e.dd,dict(tok))
    def rd(ks,j):
        a=(ks*4+j)*1024; b=WF+16*(ks&1)+4*j
        return e.ds(f"ds_read_b128 v[{b}:{b+3}], v{3+(a>>16)} offset:{a&0xffff}")
    def mainloop(normal):
        e.stamp(0); e.wait(vm=tok[0]); e("s_barrier"); e.stamp(1)
        rt=[rd(0,j) for j in range(4)]
        q=issue_ops(PRE)
        for ks in range(36):
            nxt=ks+1
            if nxt<36 and nxt%4==0:
                c=nxt//4
                while q: q.pop(0)()
                e.wait(vm=tok[c]); e("s_barrier")
                if c in(2,4,6,8): e.stamp(1+c//2)
                if c+PRE<9: q=issue_ops(c+PRE)
            nrt=[]
            for j in range(4):
                e.wait(ds=rt[j])
                w=f"v[{WF+16*(ks&1)+4*j}:{WF+16*(ks&1)+4*j+3}]"; x=f"a[{4*ks}:{4*ks+3}]"; d=f"v[{ACC+16*j}:{ACC+16*j+15}]"
                a,b=(x,w) if normal else (w,x)
                e(f"v_mfma_f32_32x32x16_bf16 {d}, {a}, {b}, {d if ks else 0}")
                if nxt<36: nrt.append(rd(nxt,j))
                if q and (j&1 or ks<3): q.pop(0)()
            rt=nrt
        e.stamp(6)
    mainloop(False)
    e("v_and_b32 v6, 31, v1"); e("v_lshlrev_b32 v6, 2, v6"); e("v_lshrrev_b32 v7, 5, v1"); e("v_lshl_add_u32 v6, v7, 16, v6")
    for j in range(4):
        A=ACC+16*j
        e("s_lshl_b32 s24, s19, 2"); e(f"s_add_u32 s24, s24, {j}")
        e("s_cmp_ge_u32 s24, 18"); e(f"s_cselect_b32 s25, 1.0, {fl(QS)}"); e("s_cselect_b32 s26, 18, 0"); e("s_cselect_b32 s27, 1, 0")
        e("s_sub_u32 s24, s24, s26")
        if j==0: e.nop(4)
        for r in range(16): e(f"v_mul_f32 v{A+r}, s25, v{A+r}")
        for r in range(8): e(f"v_cvt_pk_bf16_f32 v{TMP+8*(j&1)+r}, v{A+2*r}, v{A+2*r+1}")
        T=TMP+8*(j&1)
        e("s_cmp_ge_u32 s24, 16"); e(f"s_cbranch_scc1 {N}_x{j}")
        e("s_lshl_b32 s28, s27, 21"); e("s_lshl_b32 s29, s24, 17"); e("s_add_u32 s28, s28, s29"); e("s_lshl_b32 s29, s18, 10"); e("s_add_u32 s28, s28, s29")
        e(f"s_add_u32 s28, s28, {WS['QM'][0]}"); e("s_add_u32 s29, s28, 0x10000")
        e(f"buffer_store_dwordx4 v[{T}:{T+3}], v3, s[8:11], s28 offen sc1"); e(f"buffer_store_dwordx4 v[{T+4}:{T+7}], v3, s[8:11], s29 offen sc1")
        e(f"s_branch {N}_n{j}")
        e.label(f"{N}_x{j}")
        e("s_lshl_b32 s28, s27, 18"); e("s_sub_u32 s29, s24, 16"); e("s_lshl_b32 s29, s29, 17"); e("s_add_u32 s28, s28, s29")
        e("s_lshl_b32 s29, s18, 7"); e("s_add_u32 s28, s28, s29"); e(f"s_add_u32 s28, s28, {WS['QX'][0]}")
        for m_ in range(8):
            e(f"buffer_store_dword v{T+m_}, v6, s[8:11], s28 offen sc1")
            if m_<7: e("s_add_u32 s28, s28, 8192")
        e.label(f"{N}_n{j}")
    e(f"s_branch {N}_end")
    assert WS['KM'][0]-WS['QM'][0]==1<<21 and WS['KX'][0]-WS['QX'][0]==1<<18
    e.label(f"{N}_v"); e.vi,e.vd,e.di,e.dd,t2=st; tok.update(t2)
    mainloop(True)
    e("v_and_b32 v6, 31, v1"); e("v_lshrrev_b32 v7, 5, v1"); e("v_mul_u32_u24 v7, 9728, v7")
    e("s_mul_i32 s28, s18, 38912"); e(f"s_add_u32 s28, s28, {WS['VT'][0]}"); e("s_add_u32 s29, s28, 19456")
    e("s_sub_u32 s24, s19, 9"); e("s_lshl_b32 s24, s24, 7")
    for j in range(4):
        A=ACC+16*j; T=TMP+8*(j&1)
        if j==2: e("s_cmp_eq_u32 s19, 13"); e(f"s_cbranch_scc1 {N}_end")
        e(f"s_add_u32 s25, s24, {32*j}"); e("v_add_u32 v8, s25, v6"); e("v_mul_u32_u24 v9, 3641, v8"); e("v_lshrrev_b32 v9, 16, v9")
        e("v_add_u32 v8, v8, v9"); e(f"v_lshl_add_u32 v{10+j}, v8, 4, v7")
        if j==0: e.nop(2)
        for r in range(8): e(f"v_cvt_pk_bf16_f32 v{T+r}, v{A+2*r}, v{A+2*r+1}")
        e(f"buffer_store_dwordx4 v[{T}:{T+3}], v{10+j}, s[8:11], s28 offen sc1"); e(f"buffer_store_dwordx4 v[{T+4}:{T+7}], v{10+j}, s[8:11], s29 offen sc1")
    e.label(f"{N}_end")
    mod.add(N,e,vg=128,ag=144,sg=48)
    return (N,224,256,147456)
```

```python
from fw import *
from lay import *
from k1 import prologue_common
import os
NEG=0xFE800000
def k2(mod):
    e=E(); N='attn_kernel'
    prologue_common(e,N,256)
    KF=16; KX=52; Q=70; QX=74; SB=[76,92,108]; NM=124; PM=140; O=148; P=[164,172]; VF=180
    VOFF=24576
    e("s_and_b32 s18, s17, 15"); e("s_lshr_b32 s17, s17, 4"); e("s_lshl_b32 s19, s16, 1"); e("s_add_u32 s19, s19, s17")
    e("s_lshr_b32 s21, s20, 2"); e("s_and_b32 s22, s20, 3")
    e("s_lshl_b32 s23, s19, 1"); e("s_add_u32 s23, s23, s21")
    e("s_lshl_b32 s24, s18, 2"); e("s_add_u32 s25, s24, s22")
    e("v_and_b32 v4, 31, v1"); e("v_lshrrev_b32 v5, 5, v1")
    e("s_lshl_b32 s26, s23, 6")
    e("s_mul_i32 s27, s22, 3"); e("s_add_u32 s28, s26, s24"); e("s_add_u32 s28, s28, s27"); e("s_lshl_b32 s28, s28, 10"); e(f"s_add_u32 s28, s28, {WS['KM'][0]-8192}")
    e("s_mul_i32 s29, s21, 12"); e("s_add_u32 s29, s29, s27"); e("s_lshl_b32 s29, s29, 10")
    e("s_add_u32 s30, s26, s25"); e("s_lshl_b32 s31, s30, 10"); e(f"s_add_u32 s31, s31, {WS['QM'][0]}")
    e("s_lshl_b32 s30, s30, 7"); e(f"s_add_u32 s33, s30, {WS['QX'][0]}"); e(f"s_add_u32 s30, s30, {WS['KX'][0]-1024}")
    e("v_lshlrev_b32 v6, 2, v4")
    e("v_lshl_or_b32 v7, v5, 31, v6")
    e("s_mov_b32 m0, s29")
    e.stamp(5); e.lgkm0(); e.stamp(6)
    srd_ptr(e,8,4,WSSIZE); srd_ws(e,12,4,'VT')
    for i in range(3): tK0=e.vm(f"buffer_load_dwordx4 v3, s[8:11], s28 offen offset:{1024*i} lds")
    e.vm(f"buffer_load_dwordx4 v[{Q}:{Q+3}], v3, s[8:11], s31 offen")
    e.vm(f"buffer_load_dword v{QX}, v7, s[8:11], s33 offen")
    for t in range(9): tK=e.vm(f"buffer_load_dword v{KX+2*t}, v6, s[8:11], s30 offen offset:{128*t}")
    e("s_lshl_b32 s34, s18, 4"); e("s_sub_u32 s34, s34, 32"); e("s_mul_i32 s34, s34, 9728"); e("s_mul_i32 s35, s19, 608"); e("s_add_u32 s34, s34, s35")
    e("s_lshl_b32 s35, s20, 10"); e(f"s_add_u32 s35, s35, {VOFF}")
    for i in range(4):
        e(f"v_add_u32 v8, {512*i}, v0"); e("v_mul_u32_u24 v9, 1725, v8"); e("v_lshrrev_b32 v9, 16, v9")
        e("v_mul_u32_u24 v10, 38, v9"); e("v_sub_u32 v10, v8, v10"); e("v_mul_u32_u24 v9, 9728, v9")
        e(f"s_add_u32 m0, s35, {8192*i}")
        e("v_lshl_add_u32 v9, v10, 4, v9"); e("v_add_u32 v9, s34, v9")
        tV=e.vm("buffer_load_dwordx4 v9, s[12:15], 0 offen lds")
    e.stamp(0)
    e(f"v_mov_b32 v8, 0x3f80"); e("v_cmp_eq_u32 vcc, 0, v5"); e("v_lshlrev_b32 v9, 2, v5"); e("v_sub_u32 v9, v4, v9")
    e(f"v_cndmask_b32 v{QX+1}, 0, v8, vcc")
    for t in range(9):
        e(f"s_add_u32 s36, s25, {t}"); e("s_cmp_lt_u32 s36, 8"); e("s_cselect_b32 s36, 0xfe80, 0"); e(f"v_mov_b32 v{KX+2*t+1}, s36")
    e(f"v_mov_b32 v8, {NEG}"); e("s_mov_b32 s36, 0xffff")
    FAR=SB[0]; DIA=NM
    for g in range(4):
        for b in range(4): e(f"v_cmp_le_i32 s[{40+2*b}:{41+2*b}], {8*g+b}, v9")
        for b in range(4):
            r=4*g+b
            e(f"v_cndmask_b32 v{FAR+r}, 0, v8, s[{40+2*b}:{41+2*b}]"); e(f"v_cndmask_b32 v{DIA+r}, v8, 0, s[{40+2*b}:{41+2*b}]")
    for p in range(8):
        e(f"v_ashrrev_i32 v10, 31, v{FAR+2*p}"); e(f"v_ashrrev_i32 v11, 31, v{FAR+2*p+1}"); e(f"v_bfi_b32 v{PM+p}, s36, v10, v11")
    e("s_mul_i32 s37, s21, 12"); e("s_add_u32 s37, s37, s22"); e("s_lshl_b32 s37, s37, 10"); e("v_add_u32 v12, s37, v3")
    e("v_min_u32 v13, 18, v4"); e("v_lshlrev_b32 v13, 4, v13"); e("v_mul_u32_u24 v10, 608, v5"); e("v_add_u32 v13, v13, v10")
    e("s_mul_i32 s37, s22, 2432"); e("s_mul_i32 s38, s21, 304"); e("s_add_u32 s37, s37, s38"); e(f"s_add_u32 s37, s37, {VOFF}"); e("v_add_u32 v13, s37, v13")
    e(f"v_mov_b32 v14, {NEG}"); e(f"v_mov_b32 v15, {NEG}")
    e.stamp(7); e.wait(vm=tK0); e.stamp(8); e.wait(vm=tK0+2); e.stamp(9); e.wait(vm=tK); e.stamp(10); e("s_barrier"); e.stamp(1)
    kt=[e.ds(f"ds_read_b128 v[{KF+4*t}:{KF+4*t+3}], v12 offset:{1024*t}") for t in range(9)]
    def smf(t,d,c):
        e.wait(ds=kt[t])
        return [f"v_mfma_f32_32x32x16_bf16 v[{d}:{d+15}], v[{KF+4*t}:{KF+4*t+3}], v[{Q}:{Q+3}], {c}",
                f"v_mfma_f32_32x32x8_bf16 v[{d}:{d+15}], v[{KX+2*t}:{KX+2*t+1}], v[{QX}:{QX+1}], v[{d}:{d+15}]"]
    def mx(t):
        d=SB[t%3]
        for p in range(8): e(f"v_max3_f32 v{14+(p&1)}, v{14+(p&1)}, v{d+2*p}, v{d+2*p+1}")
    for t in range(9):
        d=SB[t%3]; c=f"v[{FAR}:{FAR+15}]" if t==0 else (f"v[{DIA}:{DIA+15}]" if t==8 else "0")
        for s_ in smf(t,d,c): e(s_)
        if t==2: e.nop(6)
        if t>=2: mx(t-2)
    e.nop(2); mx(7); e.nop(2); mx(8)
    e("v_max_f32 v14, v14, v15"); e("v_mov_b32 v15, v14"); e.nop(2)
    e("v_permlane32_swap_b32 v15, v14"); e("v_max_f32 v14, v14, v15")
    for r in range(16): e(f"v_mul_f32 v{NM+r}, -1.0, v14")
    e.stamp(2)
    e.wait(vm=tV); e("s_barrier"); e.stamp(3)
    vt={}
    def vrd(t,s_):
        b=VF+4*((2*t+s_)%4); vt[t,s_]=e.ds(f"ds_read_b128 v[{b}:{b+3}], v13 offset:{(2*t+s_)*1216}")
    def pv(t,s_):
        b=VF+4*((2*t+s_)%4); p=P[t%2]+4*s_
        e.wait(ds=vt[t,s_])
        e(f"v_mfma_f32_32x32x16_bf16 v[{O}:{O+15}], v[{b}:{b+3}], v[{p}:{p+3}], {'0' if (t,s_)==(0,0) else f'v[{O}:{O+15}]'}")
    def valu(t):
        d=SB[t%2]; p=P[t%2]; ops=[]
        for g in range(4):
            ops+=[f"v_exp_f32 v{d+4*g+b}, v{d+4*g+b}" for b in range(4)]
            ops+=[f"v_cvt_pk_bf16_f32 v{p+2*g+b}, v{d+4*g+2*b}, v{d+4*g+2*b+1}" for b in range(2)]
            if t==0: ops+=[f"v_bfi_b32 v{p+2*g+b}, v{PM+2*g+b}, 0, v{p+2*g+b}" for b in range(2)]
            if t==8: ops+=[f"v_and_b32 v{p+2*g+b}, v{PM+2*g+b}, v{p+2*g+b}" for b in range(2)]
        return ops
    vrd(0,0); vrd(0,1)
    for it in range(11):
        ms=[]
        if it<9:
            a,b=smf(it,SB[it%2],f"v[{NM}:{NM+15}]"); ms+=[lambda a=a:e(a), lambda b=b:e(b)]
        if it>=2: ms+=[lambda t=it-2:pv(t,0), lambda t=it-2:pv(t,1)]
        v=valu(it-1) if 1<=it<=9 else []
        if it==1: e.nop(11)
        if it==10: e.nop(2)
        n=len(ms); per=-(-len(v)//n)
        for k,m in enumerate(ms):
            m()
            for o in v[k*per:(k+1)*per]: e(o)
        if 1<=it<=8: vrd(it,0); vrd(it,1)
    e.stamp(4)
    e("s_mul_i32 s28, s25, 36864"); e(f"s_add_u32 s28, s28, {WS['O'][0]}"); e("s_lshl_b32 s29, s23, 10"); e("s_add_u32 s29, s29, s28")
    e("s_lshr_b32 s30, s23, 3"); e("s_lshl_b32 s30, s30, 10"); e("s_add_u32 s28, s28, s30"); e("s_bfe_u32 s30, s23, 0x10002"); e("s_lshl_b32 s30, s30, 9")
    e("s_add_u32 s28, s28, s30"); e("s_and_b32 s30, s23, 3"); e("s_lshl_b32 s30, s30, 2"); e("s_add_u32 s28, s28, s30"); e("s_add_u32 s28, s28, 32768")
    e("v_lshlrev_b32 v7, 4, v4"); e("v_lshl_or_b32 v7, v5, 31, v7")
    e(f"v_rcp_f32 v8, v{O+10}"); e.nop(1)
    for r in range(10): e(f"v_mul_f32 v{O+r}, v{O+r}, v8")
    for r in range(5): e(f"v_cvt_pk_bf16_f32 v{P[0]+r}, v{O+2*r}, v{O+2*r+1}")
    e(f"buffer_store_dwordx4 v[{P[0]}:{P[0]+3}], v3, s[8:11], s29 offen sc1")
    e(f"buffer_store_dword v{P[0]+4}, v7, s[8:11], s28 offen sc1")
    e.label(f"{N}_end")
    mod.add(N,e,vg=196,sg=48)
    return (N,256,512,VOFF+32768)
```

```python
from fw import *
from lay import *
from k1 import prologue_common
import os
def k3(mod,N,XI,XO):
    e=E()
    prologue_common(e,N,192)
    ACC=16; RES=32; FR=40
    SLOT=30720; NS=4; PRE=2
    e("s_lshl_b32 s18, s16, 2"); e("s_and_b32 s19, s17, 3"); e("s_add_u32 s18, s18, s19"); e("s_lshr_b32 s19, s17, 2")
    e("s_mul_i32 s21, s18, 73728"); e("s_lshl_b32 s22, s20, 10"); e("s_add_u32 s21, s21, s22"); e(f"s_add_u32 s21, s21, {WS['O'][0]}")
    e("s_mul_i32 s23, s19, 110592"); e("s_mul_i32 s22, s20, 3072"); e("s_add_u32 s23, s23, s22"); e(f"s_add_u32 s23, s23, {WS['WO'][0]}")
    e("s_mul_i32 s24, s20, 5120")
    e("s_and_b32 s25, s20, 1"); e("s_lshr_b32 s26, s20, 1")
    e("s_lshl_b32 s27, s18, 1"); e("s_add_u32 s27, s27, s25")
    e("s_mul_i32 s28, s19, 3"); e("s_add_u32 s28, s28, s26")
    e("s_mul_i32 s29, s27, 36864"); e("s_lshl_b32 s30, s28, 11"); e("s_add_u32 s29, s29, s30")
    e(f"s_add_u32 s30, s29, {WS[XI][0]}")
    e.lgkm0()
    srd_ptr(e,8,4,WSSIZE)
    tok={}
    def issue_ops(c):
        b=(c%NS)*SLOT
        def f0():
            e(f"s_add_u32 m0, s24, {b}"); e("s_add_u32 s31, s21, 36864"); e.vm("buffer_load_dwordx4 v3, s[8:11], s21 offen lds")
        def f1():
            e(f"s_add_u32 m0, s24, {b+1024}"); e("s_add_u32 s21, s21, 6144"); e.vm("buffer_load_dwordx4 v3, s[8:11], s31 offen lds")
        def f2():
            e(f"s_add_u32 m0, s24, {b+2048}"); e.nop(1); e.vm("buffer_load_dwordx4 v3, s[8:11], s23 offen lds")
        def f3(): e.vm("buffer_load_dwordx4 v3, s[8:11], s23 offen offset:1024 lds")
        def f4(): tok[c]=e.vm("buffer_load_dwordx4 v3, s[8:11], s23 offen offset:2048 lds"); e("s_add_u32 s23, s23, 18432")
        return [f0,f1,f2,f3,f4]
    for c in range(PRE):
        for f in issue_ops(c): f()
    e.vm(f"buffer_load_dwordx4 v[{RES}:{RES+3}], v3, s[8:11], s30 offen"); tR=e.vm(f"buffer_load_dwordx4 v[{RES+4}:{RES+7}], v3, s[8:11], s30 offen offset:1024")
    e("s_lshl_b32 s31, s25, 10"); e("v_add_u32 v4, s31, v3"); e("v_add_u32 v5, 0x10000, v4")
    e("s_lshl_b32 s31, s26, 10"); e("s_add_u32 s31, s31, 2048"); e("v_add_u32 v6, s31, v3"); e("v_add_u32 v7, 0x10000, v6")
    def rd(ks):
        c,l=divmod(ks,6); a=(c%NS)*SLOT+l*5120; b=FR+8*(ks%4); h=1 if a>=0x10000 else 0
        e.ds(f"ds_read_b128 v[{b}:{b+3}], v{4+h} offset:{a&0xffff}")
        return e.ds(f"ds_read_b128 v[{b+4}:{b+7}], v{6+h} offset:{a&0xffff}")
    e.stamp(0); e.wait(vm=tok[0]); e("s_barrier"); e.stamp(1)
    LA=3; rt={}
    for ks in range(LA): rt[ks]=rd(ks)
    q=issue_ops(PRE)
    for ks in range(36):
        n=ks+LA
        if n<36 and n%6==0:
            c=n//6
            while q: q.pop(0)()
            e.wait(vm=tok[c]); e("s_barrier")
            if c+PRE<6: q=issue_ops(c+PRE)
        e.wait(ds=rt[ks]); b=FR+8*(ks%4); d=f"v[{ACC}:{ACC+15}]"
        e(f"v_mfma_f32_32x32x16_bf16 {d}, v[{b+4}:{b+7}], v[{b}:{b+3}], {d if ks else 0}")
        if n<36: rt[n]=rd(n)
        if q: q.pop(0)()
        if q and ks<3: q.pop(0)()
    e.stamp(2)
    e(f"s_add_u32 s30, s29, {WS[XO][0]}")
    e("s_lshl_b32 s31, s28, 14"); e("s_lshl_b32 s33, s27, 8"); e("s_add_u32 s31, s31, s33"); e(f"s_add_u32 s31, s31, {WS['ST'][0]}")
    e("s_mov_b32 s34, 0x00003f80"); e("s_mov_b32 s35, 0x3f800000"); e("s_mov_b32 s36, 0x3f803f80")
    e("v_and_b32 v8, 31, v1"); e("v_lshlrev_b32 v8, 3, v8"); e("v_lshrrev_b32 v9, 5, v1"); e("v_lshl_or_b32 v8, v9, 31, v8")
    e("v_mov_b32 v10, 0"); e("v_mov_b32 v11, 0")
    e.wait(vm=tR)
    for r in range(8):
        e(f"v_dot2_f32_bf16 v{ACC+2*r}, v{RES+r}, s34, v{ACC+2*r}"); e(f"v_dot2_f32_bf16 v{ACC+2*r+1}, v{RES+r}, s35, v{ACC+2*r+1}")
    e.nop(1)
    for r in range(8): e(f"v_cvt_pk_bf16_f32 v{FR+r}, v{ACC+2*r}, v{ACC+2*r+1}")
    e(f"buffer_store_dwordx4 v[{FR}:{FR+3}], v3, s[8:11], s30 offen sc1"); e(f"buffer_store_dwordx4 v[{FR+4}:{FR+7}], v3, s[8:11], s30 offen offset:1024 sc1")
    for r in range(8):
        e(f"v_dot2c_f32_bf16 v10, s36, v{FR+r}"); e(f"v_dot2c_f32_bf16 v11, v{FR+r}, v{FR+r}")
    e.nop(3)
    e("v_mov_b32 v12, v10"); e("v_mov_b32 v13, v11"); e.nop(2)
    e("v_permlane32_swap_b32 v12, v10"); e("v_permlane32_swap_b32 v13, v11")
    e("v_add_f32 v10, v10, v12"); e("v_add_f32 v11, v11, v13")
    e("buffer_store_dwordx2 v[10:11], v8, s[8:11], s31 offen sc1")
    e.label(f"{N}_end")
    mod.add(N,e,vg=72,sg=48)
    return (N,192,384,NS*SLOT)
```

```python
from fw import *
from lay import *
from k1 import prologue_common
import os, math
C1=-2*math.sqrt(2/math.pi)*math.log2(math.e); C2=C1*0.044715
def k4(mod,N,XI):
    e=E()
    prologue_common(e,N,256)
    XV=16; ACC=48; WF=176; TMP=200; OUT=208; CON=216; EXT=222
    NWF=6; LA=int(os.environ.get('K4LA','4')); NS=8; CH=12288
    BUD=int(os.environ.get('K4BUD','24'))
    e("s_and_b32 s18, s16, 1"); e("s_lshl_b32 s18, s18, 2"); e("s_and_b32 s19, s17, 3"); e("s_add_u32 s18, s18, s19")
    e("s_lshr_b32 s19, s16, 1"); e("s_lshl_b32 s19, s19, 3"); e("s_lshr_b32 s17, s17, 2"); e("s_add_u32 s19, s19, s17")
    e("s_lshl_b32 s18, s18, 3"); e("s_lshl_b32 s21, s20, 1"); e("s_add_u32 s18, s18, s21")
    e("s_mul_i32 s21, s18, 36864"); e(f"s_add_u32 s21, s21, {WS[XI][0]}"); e("s_add_u32 s22, s21, 36864")
    e(f"s_mul_i32 s23, s19, {324*1024}"); e("s_mul_i32 s24, s20, 3072"); e("s_add_u32 s23, s23, s24"); e(f"s_add_u32 s23, s23, {WS['WGU'][0]}")
    e.lgkm0()
    srd_ptr(e,8,4,WSSIZE)
    def xreg(ks,t):
        f=2*ks+t
        return f"a[{4*f}:{4*f+3}]" if f<64 else f"v[{XV+4*(f-64)}:{XV+4*(f-64)+3}]"
    tok={}; stt={}
    def ld_ops(c):
        ops=[]
        def w(j):
            def f():
                if j==0:
                    e(f"s_add_u32 m0, s24, {(c%NS)*CH}")
                    if c: e(f"s_add_u32 s23, s23, {CH}")
                    else: e.nop(1)
                tok[c]=e.vm(f"buffer_load_dwordx4 v3, s[8:11], s23 offen offset:{1024*j} lds")
            return f
        ops+=[w(j) for j in range(3)]
        if c<9:
            def x(j,t):
                def f():
                    tok[c]=e.vm(f"buffer_load_dwordx4 {xreg(4*c+j,t)}, v3, s[8:11], s{21+t} offen offset:{1024*j}")
                    if j==3: e(f"s_add_u32 s{21+t}, s{21+t}, 4096")
                return f
            ops+=[x(j,t) for j in range(4) for t in range(2)]
        if c==8:
            def st(i,t):
                def f():
                    r=sreg(i,t); stt[t]=e.vm(f"buffer_load_dwordx2 v[{r}:{r+1}], v5, s[8:11], s25 offen offset:{256*t}")
                    if t==1: e("s_add_u32 s25, s25, 16384")
                return f
            ops+=[st(i,t) for i in range(9) for t in range(2)]
        return ops
    def sreg(i,t):
        k=2*i+t
        return ACC+96+2*k if k<16 else EXT+2*(k-16)
    PRE=2
    for c in range(PRE):
        for f in ld_ops(c): f()
    e("v_add_u32 v4, 0x10000, v3")
    e("v_and_b32 v6, 31, v1"); e("v_lshrrev_b32 v7, 5, v1"); e("v_mul_u32_u24 v5, 147456, v7"); e("v_lshl_add_u32 v5, v6, 3, v5")
    e("s_lshl_b32 s25, s18, 8"); e(f"s_add_u32 s25, s25, {WS['ST'][0]}")
    e("v_lshrrev_b32 v8, 4, v6"); e("v_mul_u32_u24 v8, 147456, v8"); e("v_and_b32 v6, 15, v6"); e("v_lshl_add_u32 v8, v6, 4, v8"); e("v_lshl_add_u32 v8, v7, 8, v8")
    e("s_mul_i32 s26, s18, 294912"); e("s_mul_i32 s27, s19, 4608"); e("s_add_u32 s26, s26, s27"); e(f"s_add_u32 s26, s26, {WS['H'][0]}"); e("s_add_u32 s27, s26, 294912")
    e("s_add_u32 s28, s26, 4096"); e("s_add_u32 s29, s27, 4096")
    def V(s,c=4): return (c,lambda: e(s))
    def stats_ops():
        ops=[]
        for t in range(2):
            a=sreg(0,t); c1,c2,vv=CON+3*t,CON+3*t+1,CON+3*t+2
            ops.append((4,lambda t=t: e.wait(vm=stt[t])))
            for i in range(1,9):
                ops+=[V(f"v_add_f32 v{a}, v{a}, v{sreg(i,t)}"),V(f"v_add_f32 v{a+1}, v{a+1}, v{sreg(i,t)+1}")]
            ops+=[V(f"v_mov_b32 v{TMP}, v{a}"),V(f"v_mov_b32 v{TMP+1}, v{a+1}"),V("s_nop 1",8)]
            ops+=[V(f"v_permlane32_swap_b32 v{TMP}, v{a}"),V(f"v_permlane32_swap_b32 v{TMP+1}, v{a+1}")]
            ops+=[V(f"v_add_f32 v{a}, v{a}, v{TMP}"),V(f"v_add_f32 v{a+1}, v{a+1}, v{TMP+1}")]
            ops+=[V(f"v_mul_f32 v{a}, {fl(1.0/D)}, v{a}"),V(f"v_mul_f32 v{a+1}, {fl(1.0/D)}, v{a+1}"),V(f"v_fma_f32 v{a+1}, -v{a}, v{a}, v{a+1}")]
            ops+=[V(f"v_max_f32 v{a+1}, 0, v{a+1}"),V(f"v_add_f32 v{vv}, {fl(1e-5)}, v{a+1}"),V(f"v_rsq_f32 v{a}, v{vv}",8),V("s_nop 0")]
            ops+=[V(f"v_mul_f32 v{c1}, {fl(C1)}, v{a}"),V(f"v_mul_f32 v{a+1}, v{a}, v{a}"),V(f"v_mul_f32 v{a+1}, v{a+1}, v{a}"),V(f"v_mul_f32 v{c2}, {fl(C2)}, v{a+1}")]
        return ops
    ecount=[0]
    def epi_ops(fs):
        ops=[]
        for t in range(2):
            A=ACC+32*(fs%4)+16*t; c1,c2,vv=CON+3*t,CON+3*t+1,CON+3*t+2
            O=OUT+4*(ecount[0]%2); ecount[0]+=1
            for hf in range(2):
                T=TMP+4*hf; g=A+4*hf; u=A+8+4*hf
                ops+=[V(f"v_mul_f32 v{T+i}, v{g+i}, v{g+i}") for i in range(4)]
                ops+=[V(f"v_fma_f32 v{T+i}, v{T+i}, v{c2}, v{c1}") for i in range(4)]
                ops+=[V(f"v_mul_f32 v{T+i}, v{T+i}, v{g+i}") for i in range(4)]
                for i in range(4): ops+=[V(f"v_exp_f32 v{T+i}, v{T+i}",8),V(f"v_mul_f32 v{u+i}, v{u+i}, v{g+i}")]
                ops+=[V(f"v_fma_f32 v{T+i}, v{T+i}, v{vv}, v{vv}") for i in range(4)]
                ops+=[V(f"v_rcp_f32 v{T+i}, v{T+i}",8) for i in range(4)]
                ops+=[V(f"v_mul_f32 v{u+i}, v{u+i}, v{T+i}") for i in range(4)]
                ops+=[V(f"v_cvt_pk_bf16_f32 v{O+2*hf+i}, v{u+2*i}, v{u+2*i+1}") for i in range(2)]
            so,off=(26+t,512*fs) if fs<8 else (28+t,0)
            ops.append((4,lambda O=O,so=so,off=off: e.vm(f"buffer_store_dwordx4 v[{O}:{O+3}], v8, s[8:11], s{so} offen offset:{off} sc1")))
        return ops
    seq=[(ks,fs) for ks in range(36) for fs in range(3)]+[(ks,fs) for fs in range(3,9) for ks in range(36)]
    rt={}
    def rd(n):
        c,l=divmod(n,12); a=(c%NS)*CH+l*1024; b=WF+4*(n%NWF)
        rt[n]=e.ds(f"ds_read_b128 v[{b}:{b+3}], v{3+(a>>16)} offset:{a&0xffff}")
    e.stamp(0); e.wait(vm=tok[0]); e("s_barrier"); e.stamp(1)
    for n in range(LA): rd(n)
    lq=[]; nxt_ld=PRE; fq=[]; pend={}
    def ahead(c): return min(26, c+2 if c<7 else min(c+6, 9+2*(c-7)))
    def refill(c):
        nonlocal nxt_ld
        while nxt_ld<=ahead(c): lq.extend((nxt_ld,f) for f in ld_ops(nxt_ld)); nxt_ld+=1
    refill(0)
    for n,(ks,fs) in enumerate(seq):
        m=n+LA; used=0
        if m<324 and m%12==0:
            c=m//12
            while lq and lq[0][0]<=c: lq.pop(0)[1]()
            e.wait(vm=tok[c]); e("s_barrier"); used+=8
            refill(c)
            if c in(3,6,9,12,18,24): e.stamp({3:2,6:3,9:4,12:5,18:6,24:7}[c])
        if n==108: assert not fq, 'stats late'
        if n==88: fq.extend((None,o) for o in stats_ops())
        if n>=108 and ks==0:
            assert not any(tag==fs-4 for tag,_ in fq), f"epilogue of {fs-4} late"
        if n>=108 and ks==3:
            new={3:[0,1],4:[2,3]}.get(fs,[fs-1])
            for k in new: fq.extend((k,o) for o in epi_ops(k))
        b=WF+4*(n%NWF)
        for t in range(2):
            if t==0 and e.wait(ds=rt[n]): used+=4
            d=f"v[{ACC+32*(fs%4)+16*t}:{ACC+32*(fs%4)+16*t+15}]"
            e(f"v_mfma_f32_32x32x16_bf16 {d}, v[{b}:{b+3}], {xreg(ks,t)}, {d if ks else 0}")
            if t==0 and m<324: rd(m); used+=4
            if lq and (t==1 or n<108): lq.pop(0)[1](); used+=8
            while fq and used+fq[0][1][0]<=BUD: c_,f=fq.pop(0)[1]; f(); used+=c_
            used=0
    e.stamp(8)
    for _,(c_,f) in fq: f()
    e.nop(12)
    for c_,f in epi_ops(8): f()
    e.stamp(9)
    e.label(f"{N}_end")
    mod.add(N,e,vg=226,ag=256,sg=48)
    return (N,256,256,NS*CH)
```

```python
from fw import *
from lay import *
from k1 import prologue_common
import os
def k5(mod):
    e=E(); N='down_kernel'
    prologue_common(e,N,256)
    ACC=16; WF=88; NWF=8; HF=120; NH=12; OUT=216
    LA=int(os.environ.get('K5LA','5')); LEAD=int(os.environ.get('K5LEAD','54')); RING=144
    e("s_lshr_b32 s18, s16, 1"); e("s_and_b32 s19, s16, 1"); e("s_lshl_b32 s19, s19, 3"); e("s_and_b32 s21, s17, 7"); e("s_add_u32 s19, s19, s21"); e("s_lshr_b32 s17, s17, 3")
    e("s_lshl_b32 s19, s19, 2"); e("s_add_u32 s19, s19, s20")
    e("s_mul_i32 s21, s19, 294912"); e("s_mul_i32 s22, s18, 36864"); e("s_add_u32 s21, s21, s22"); e(f"s_add_u32 s21, s21, {WS['H'][0]}"); e("s_add_u32 s22, s21, 147456")
    e("s_lshl_b32 s23, s17, 2"); e("s_add_u32 s23, s23, s18"); e(f"s_mul_i32 s23, s23, {324*1024}"); e(f"s_add_u32 s23, s23, {WS['WD'][0]}")
    e("s_mul_i32 s24, s20, 3072"); e("s_mul_i32 s25, s20, 6144"); e("s_mul_i32 s26, s20, 9216")
    e.lgkm0()
    srd_ptr(e,8,4,WSSIZE)
    sizes=[12,24]+[36]*8; start=[sum(sizes[:i]) for i in range(len(sizes)+1)]
    tokW={}; tokH={}
    items=[]
    for c,sz in enumerate(sizes):
        per=sz//4; sr={3:24,6:25,9:26}[per]
        need=start[c+1]-RING
        cb=0
        while need>0 and start[max(cb-1,0)]<need: cb+=1
        for i in range(per):
            def f(c=c,i=i,sr=sr):
                if i%4==0:
                    e(f"s_add_u32 m0, s{sr}, {((start[c]%RING)+i)*1024}"); e(f"s_add_u32 s27, s{sr}, {(start[c]+i)*1024}"); e("s_add_u32 s27, s27, s23")
                tokW[c]=e.vm(f"buffer_load_dwordx4 v3, s[8:11], s27 offen offset:{1024*(i%4)} lds")
            items.append((start[c]-LA+i*0.01-1,cb,f))
    for ks in range(36):
        for t in range(2):
            def f(ks=ks,t=t):
                r=HF+8*(ks%NH)+4*t
                tokH[ks]=e.vm(f"buffer_load_dwordx4 v[{r}:{r+3}], v3, s[8:11], s{21+t} offen offset:{1024*(ks%4)}")
                if ks%4==3: e(f"s_add_u32 s{21+t}, s{21+t}, 4096")
            items.append((9*ks+t*0.01,0,f,ks))
    items.sort(key=lambda x:x[0])
    def can(it,n,cbar):
        if it[1]>cbar: return False
        if len(it)>3 and 9*(it[3]-NH+1)>n: return False
        return True
    while items and items[0][0]<LEAD-20: items.pop(0)[2]()
    e("v_add_u32 v4, 0x10000, v3"); e("v_add_u32 v5, 0x20000, v3")
    rt={}
    def rd(n):
        a=(n%RING)*1024; b=WF+4*(n%NWF)
        rt[n]=e.ds(f"ds_read_b128 v[{b}:{b+3}], v{3+(a>>16)} offset:{a&0xffff}")
    e.stamp(0); e.wait(vm=tokW[0]); e("s_barrier"); e.stamp(1)
    cbar=0
    for n in range(LA): rd(n)
    for n in range(324):
        ks,j=divmod(n,9); m=n+LA
        if m<324 and m in start:
            c=start.index(m)
            while c not in tokW or any(it[0]<=start[c]-LA for it in items):
                assert can(items[0],n,cbar); items.pop(0)[2]()
            e.wait(vm=tokW[c]); e("s_barrier"); cbar=c
            if c in(2,4,6,8): e.stamp(1+c//2)
        if j==0:
            while any(it[0]<=9*ks+0.5 for it in items): assert can(items[0],n,cbar); items.pop(0)[2]()
        b=WF+4*(n%NWF)
        for t in range(2):
            if t==0: e.wait(vm=tokH[ks] if j==0 else None, ds=rt[n])
            d=f"v[{ACC+8*j+4*t}:{ACC+8*j+4*t+3}]"; h=HF+8*(ks%NH)+4*t
            e(f"v_mfma_f32_16x16x32_bf16 {d}, v[{b}:{b+3}], v[{h}:{h+3}], {d if ks else 0}")
            if t==0 and m<324: rd(m)
            if t==1 and items and items[0][0]<n+LEAD and can(items[0],n+1,cbar): items.pop(0)[2]()
    e.stamp(6)
    e(f"s_mul_i32 s28, s18, {XB}"); e("s_mul_i32 s29, s19, 36864"); e("s_add_u32 s28, s28, s29"); e("s_mul_i32 s29, s17, 9216"); e("s_add_u32 s28, s28, s29")
    e(f"s_add_u32 s28, s28, {WS['P'][0]}"); e("s_add_u32 s29, s28, 4096"); e("s_add_u32 s30, s28, 8192")
    e("v_and_b32 v6, 15, v1"); e("v_lshlrev_b32 v6, 4, v6"); e("v_lshrrev_b32 v7, 4, v1"); e("v_lshl_add_u32 v6, v7, 9, v6")
    k=0
    for p in range(4):
        for t in range(2):
            O=OUT+4*(k%4); k+=1; a=ACC+16*p+4*t; b=a+8
            e(f"v_cvt_pk_bf16_f32 v{O}, v{a}, v{a+1}"); e(f"v_cvt_pk_bf16_f32 v{O+1}, v{a+2}, v{a+3}")
            e(f"v_cvt_pk_bf16_f32 v{O+2}, v{b}, v{b+1}"); e(f"v_cvt_pk_bf16_f32 v{O+3}, v{b+2}, v{b+3}")
            e(f"buffer_store_dwordx4 v[{O}:{O+3}], v6, s[8:11], s{28+(p>>1)} offen offset:{256*t+2048*(p&1)} sc1")
    O=OUT; a=ACC+64
    e(f"v_cvt_pk_bf16_f32 v{O}, v{a}, v{a+1}"); e(f"v_cvt_pk_bf16_f32 v{O+1}, v{a+2}, v{a+3}")
    e(f"v_cvt_pk_bf16_f32 v{O+2}, v{a+4}, v{a+5}"); e(f"v_cvt_pk_bf16_f32 v{O+3}, v{a+6}, v{a+7}"); e.nop(2)
    e(f"v_permlane16_swap_b32 v{O}, v{O+2}"); e(f"v_permlane16_swap_b32 v{O+1}, v{O+3}")
    e(f"buffer_store_dwordx4 v[{O}:{O+3}], v3, s[8:11], s30 offen sc1")
    e.label(f"{N}_end")
    mod.add(N,e,vg=232,sg=48)
    return (N,256,256,RING*1024)
```

```python
from fw import *
from lay import *
from k_ln import *
def k6(mod,N,XI,XO):
    e=E()
    e("s_cmp_ge_u32 s2, 256"); e(f"s_cbranch_scc1 {N}_end")
    e("s_load_dwordx2 s[4:5], s[0:1], 72")
    if XO is None: e("s_load_dwordx2 s[6:7], s[0:1], 56")
    e("v_and_b32 v1, 63, v0"); e("v_lshrrev_b32 v2, 6, v0"); e("v_and_b32 v3, 7, v1")
    e("v_readfirstlane_b32 s20, v2")
    e("v_lshrrev_b32 v4, 3, v1"); e("v_lshlrev_b32 v6, 9, v4"); e("v_lshl_add_u32 v6, v3, 4, v6")
    e("s_lshr_b32 s29, s2, 2"); e("s_mul_i32 s29, s29, 36864"); e("s_mul_i32 s33, s20, 12288"); e("s_add_u32 s29, s29, s33")
    e("s_and_b32 s33, s2, 3"); e("s_lshl_b32 s33, s33, 7"); e("s_add_u32 s29, s29, s33")
    e.lgkm0()
    srd_ptr(e,8,4,WSSIZE)
    srcs=[WS[XI][0]]+[WS['P'][0]+s*XB for s in range(4)]
    tok={}
    for i in range(3):
        for q,off in enumerate(srcs):
            r=16+20*i+4*q
            e(f"s_add_u32 s30, s29, {off+4096*i}"); tok[i]=e.vm(f"buffer_load_dwordx4 v[{r}:{r+3}], v6, s[8:11], s30 offen")
    e("s_mov_b32 s34, 0x00003f80"); e("s_mov_b32 s35, 0x3f800000"); e("s_mov_b32 s21, 0x3f803f80")
    if XO is None:
        srd_ptr(e,12,6,XB)
        e("v_mul_u32_u24 v5, 1152, v3"); e("v_lshl_add_u32 v5, v4, 4, v5")
        e("s_mul_i32 s22, s2, 9216"); e("s_mul_i32 s23, s20, 384"); e("s_add_u32 s22, s22, s23")
    else:
        e("s_lshl_b32 s31, s20, 6"); e("v_lshlrev_b32 v8, 3, v3"); e("v_add_u32 v7, s31, v8")
    XP=76; F=88
    e.stamp(0)
    for i in range(3):
        e.wait(vm=tok[i]); b=16+20*i
        for r in range(4):
            e(f"v_lshlrev_b32 v{F+2*r}, 16, v{b+r}"); e(f"v_and_b32 v{F+2*r+1}, 0xffff0000, v{b+r}")
        for q in range(1,5):
            for r in range(4):
                e(f"v_dot2_f32_bf16 v{F+2*r}, v{b+4*q+r}, s34, v{F+2*r}"); e(f"v_dot2_f32_bf16 v{F+2*r+1}, v{b+4*q+r}, s35, v{F+2*r+1}")
        e.nop(1)
        for r in range(4): e(f"v_cvt_pk_bf16_f32 v{XP+4*i+r}, v{F+2*r}, v{F+2*r+1}")
        if XO is None: e(f"buffer_store_dwordx4 v[{XP+4*i}:{XP+4*i+3}], v5, s[12:15], s22 offen offset:{128*i}")
        else:
            e(f"s_add_u32 s30, s29, {WS[XO][0]+4096*i}"); e(f"buffer_store_dwordx4 v[{XP+4*i}:{XP+4*i+3}], v6, s[8:11], s30 offen sc1")
    e.stamp(1)
    if XO is not None:
        ln_stats_write(e,XP,10,11,12,7,21,None)
        e.lgkm0(); e("s_barrier")
        ln_finish(e,XP,16,10,8,88)
        for i in range(3):
            e(f"s_add_u32 s30, s29, {WS['XN'][0]+4096*i}"); e(f"buffer_store_dwordx4 v[{16+4*i}:{19+4*i}], v6, s[8:11], s30 offen sc1")
    e.label(f"{N}_end")
    mod.add(N,e,vg=96,sg=48)
    return (N,256,192,256)
```

```python
from fw import *
from lay import *
def red8(e,v,t):
    e.nop(2)
    e(f"v_add_f32_dpp v{v}, v{v}, v{v} row_ror:8 row_mask:0xf bank_mask:0xf")
    e(f"v_mov_b32 v{t}, v{v}"); e.nop(2)
    e(f"v_permlane16_swap_b32 v{t}, v{v}"); e(f"v_add_f32 v{v}, v{v}, v{t}")
    e(f"v_mov_b32 v{t}, v{v}"); e.nop(2)
    e(f"v_permlane32_swap_b32 v{t}, v{v}"); e(f"v_add_f32 v{v}, v{v}, v{t}")
def ln_stats_write(e,xp,vs,vq,vt,vlds,sone,sx):
    e(f"v_mov_b32 v{vs}, 0"); e(f"v_mov_b32 v{vq}, 0")
    for r in range(12):
        e(f"v_dot2c_f32_bf16 v{vs}, s{sone}, v{xp+r}")
        e(f"v_dot2c_f32_bf16 v{vq}, v{xp+r}, v{xp+r}")
    e.nop(3)
    red8(e,vs,vt); red8(e,vq,vt)
    assert vq==vs+1 and vs%2==0
    e.ds(f"ds_write_b64 v{vlds}, v[{vs}:{vq}]")
def ln_finish(e,xp,xo,vs,vlds_rd,tmp):
    a,b,c=tmp,tmp+2,tmp+4
    e.ds(f"ds_read_b64 v[{a}:{a+1}], v{vlds_rd}"); e.ds(f"ds_read_b64 v[{b}:{b+1}], v{vlds_rd} offset:64"); t=e.ds(f"ds_read_b64 v[{c}:{c+1}], v{vlds_rd} offset:128")
    e.wait(ds=t)
    e(f"v_add_f32 v{a}, v{a}, v{b}"); e(f"v_add_f32 v{a+1}, v{a+1}, v{b+1}")
    e(f"v_add_f32 v{a}, v{a}, v{c}"); e(f"v_add_f32 v{a+1}, v{a+1}, v{c+1}")
    e(f"v_mul_f32 v{a}, {fl(1.0/D)}, v{a}")
    e(f"v_mul_f32 v{a+1}, {fl(1.0/D)}, v{a+1}")
    e(f"v_fma_f32 v{a+1}, -v{a}, v{a}, v{a+1}")
    e(f"v_max_f32 v{a+1}, 0, v{a+1}")
    e(f"v_add_f32 v{a+1}, {fl(1e-5)}, v{a+1}")
    e(f"v_rsq_f32 v{a+1}, v{a+1}"); e.nop(1)
    e(f"v_mul_f32 v{a}, v{a}, v{a+1}")
    for r in range(12):
        e(f"v_lshlrev_b32 v{b}, 16, v{xp+r}"); e(f"v_and_b32 v{b+1}, 0xffff0000, v{xp+r}")
        e(f"v_fma_f32 v{b}, v{b}, v{a+1}, -v{a}"); e(f"v_fma_f32 v{b+1}, v{b+1}, v{a+1}, -v{a}")
        e(f"v_cvt_pk_bf16_f32 v{xo+r}, v{b}, v{b+1}")
```

```python
S,D,H,DH,WIN,DF=2048,576,32,18,256,4608
KA=dict(x0=0,wqkv=8,wo=16,wg=32,wu=40,wd=48,out=56,dbg=64,ws=72)
XB=S*D*2
WS=dict(
 WQKV=(0x0000000,14*144*1024), WO=(0x0200000,6*36*3*1024), WGU=(0x0300000,32*324*1024), WD=(0x0E00000,16*324*1024),
 X0=(0x1400000,XB), X1=(0x1700000,XB), X2=(0x1A00000,XB), X3=(0x1D00000,XB), XN=(0x2000000,XB),
 QM=(0x2300000,32*64*1024), KM=(0x2500000,32*64*1024), QX=(0x2700000,32*2048*4), KX=(0x2740000,32*2048*4),
 VT=(0x2800000,128*2*576*16+64), O=(0x2B00000,XB), ST=(0x2E00000,18*2048*8), H=(0x3000000,S*DF*2), P=(0x4400000,4*XB), FL=(0x5000000,2*65536), ST2=(0x2E80000,16*2048*8))
WSSIZE=268435456
def srd_ws(e,r,sws,name,size=None):
    off,sz=WS[name]
    e(f"s_add_u32 s{r}, s{sws}, {off}"); e(f"s_addc_u32 s{r+1}, s{sws+1}, 0")
    e(f"s_mov_b32 s{r+2}, {size or sz}"); e(f"s_mov_b32 s{r+3}, 0x20000")
def srd_ptr(e,r,sp,size):
    e(f"s_mov_b32 s{r}, s{sp}"); e(f"s_mov_b32 s{r+1}, s{sp+1}")
    e(f"s_mov_b32 s{r+2}, {size}"); e(f"s_mov_b32 s{r+3}, 0x20000")

KCLS=[(0,1,5,6),(2,7),(3,4,8)]
KORD=[9*j+r for cl in KCLS for j in range(4) for r in cl]
```

```python
import sys
from fw import *
from lay import *
import k0
HDR=open('interleave_layers__sliding_block__glu_gated_geglu__prompt.s.ref').read().split('; Override launch')[0].rstrip()
def build():
    m=Module(); L=[]
    K0=k0.k0(m); L.append(K0)
    try:
        import k1; K1=k1.k1(m); L.append(K1)
        import k2; K2=k2.k2(m); L.append(K2)
        import k3; K3a=k3.k3(m,'opa_kernel','X0','X1'); L.append(K3a)
        import k4; K4a=k4.k4(m,'gua_kernel','X1'); L.append(K4a)
        import k5; K5=k5.k5(m); L.append(K5)
        import k6; K6a=k6.k6(m,'reda_kernel','X1','X2'); L.append(K6a)
        K3b=k3.k3(m,'opb_kernel','X2','X3'); K4b=k4.k4(m,'gub_kernel','X3'); K6b=k6.k6(m,'redb_kernel','X3',None)
        L+=[K1,K2,K3b,K4b,K5,K6b]
    except ModuleNotFoundError as ex:
        print("partial build:",ex,file=sys.stderr)
    for k in L: m.launch(*k)
    for er in m.errs: print(er,file=sys.stderr)
    print(len(m.errs),"hazard errors",file=sys.stderr)
    return m.text(HDR)
if __name__=='__main__':
    t=build(); open(sys.argv[1] if len(sys.argv)>1 else 'k.s','w').write(t)
```

```python
import re
TRANS=('v_exp_f32','v_log_f32','v_rcp_f32','v_rsq_f32','v_sqrt_f32','v_sin_f32','v_cos_f32')
def regs(op):
    op=op.strip()
    if op.startswith('-'): op=op[1:]
    m=re.fullmatch(r'abs\((.*)\)',op)
    if m: op=m.group(1)
    m=re.fullmatch(r'\|(.*)\|',op)
    if m: op=m.group(1)
    m=re.fullmatch(r'([vas])(\d+)',op)
    if m: return [op]
    m=re.fullmatch(r'([vas])\[(\d+):(\d+)\]',op)
    if m: return [f"{m.group(1)}{i}" for i in range(int(m.group(2)),int(m.group(3))+1)]
    if op in('vcc','exec','m0','scc'): return [op]
    if op in('vcc_lo','vcc_hi'): return ['vcc']
    if op in('exec_lo','exec_hi'): return ['exec']
    return []
class Ins:
    def __init__(s,text):
        s.text=text; t=text.split(';')[0].strip()
        parts=t.split(None,1); s.op=parts[0]; rest=parts[1] if len(parts)>1 else ''
        ops=[o.strip() for o in re.split(r',(?![^\[]*\])',rest)] if rest else []
        if ops:
            last=ops[-1].split(); s.mods=' '.join(last[1:]); ops[-1]=last[0] if last else ''
        else: s.mods=''
        s.ops=ops; op=s.op
        for suf in('_e32','_e64','_dpp','_sdwa'):
            if op.endswith(suf): op=op[:-len(suf)]
        s.base=op
        s.dpp=s.op.endswith('_dpp')
        s.mfma=op.startswith('v_mfma'); s.valu=op.startswith('v_') and not s.mfma
        s.trans=op in TRANS; s.ds=op.startswith('ds_'); s.vmem=op.startswith(('buffer_','global_','flat_'))
        s.salu=op.startswith('s_'); s.W=[]; s.R=[]; s.states=1
        s.ldsdma = s.vmem and (' lds' in ' '+s.mods or 'load_lds' in op)
        if op=='s_nop': s.states=int(ops[0],0)+1
        if s.mfma:
            s.D=regs(ops[0]); s.A=regs(ops[1]); s.B=regs(ops[2]); s.C=regs(ops[3]); s.W=s.D; s.R=s.A+s.B+s.C
            s.passes = 8 if '32x32' in op else 4
        elif s.valu:
            if op.startswith('v_cmp'): s.W=regs(ops[0]); s.R=sum((regs(o) for o in ops[1:]),[])
            elif 'permlane' in op and 'swap' in op: s.W=regs(ops[0])+regs(ops[1]); s.R=list(s.W)
            elif op in('v_add_co_u32','v_sub_co_u32','v_addc_co_u32','v_subb_co_u32'):
                s.W=regs(ops[0])+regs(ops[1]); s.R=sum((regs(o) for o in ops[2:]),[])
            else:
                s.W=regs(ops[0]); s.R=sum((regs(o) for o in ops[1:]),[])
                if op in('v_fmac_f32','v_dot2c_f32_bf16','v_pk_fmac_f16') or s.dpp or s.op.endswith('_sdwa'): s.R+=s.W
        elif s.ds:
            if 'read' in op or 'permute' in op or 'swizzle' in op: s.W=regs(ops[0]); s.R=sum((regs(o) for o in ops[1:]),[])
            else: s.R=sum((regs(o) for o in ops),[])
        elif s.vmem:
            if 'load' in op and not s.ldsdma: s.W=regs(ops[0]); s.R=sum((regs(o) for o in ops[1:]),[])
            else: s.R=sum((regs(o) for o in ops),[])
            if s.ldsdma: s.R+=['m0']
            s.wide = 'store' in op and ('x3' in op or 'x4' in op)
            if s.wide: s.data=regs(ops[0]) if op.startswith('buffer') else regs(ops[1])
        elif s.salu:
            if op.startswith(('s_cmp','s_cbranch','s_branch','s_waitcnt','s_barrier','s_nop','s_endpgm','s_setprio','s_sleep')): s.R=sum((regs(o) for o in ops),[])
            else:
                s.W=regs(ops[0]); s.R=sum((regs(o) for o in ops[1:]),[])
                if 'saveexec' in op: s.W+=['exec']
def check_hazards(lines,name=''):
    ins=[]
    for l in lines:
        t=l.split(';')[0].strip()
        if not t or t.endswith(':') or t.startswith('.'): continue
        ins.append(Ins(t))
    errs=[]
    for j,c in enumerate(ins):
        dist=0
        for i in range(j-1,max(-1,j-24),-1):
            p=ins[i]; need=0; why=''
            def ov(a,b): return set(a)&set(b)
            pW=[r for r in p.W];
            if p.valu:
                vw=[r for r in pW if r[0] in 'va' and r!='vcc']; sw=[r for r in pW if r[0]=='s' or r=='vcc']
                if c.mfma and ov(vw,c.R): need,why=2,'valu->mfma'
                if p.trans and c.valu and not c.trans and ov(vw,c.R): need,why=max(need,1),'trans->valu'
                if c.valu and ('permlane' in c.base or c.dpp) and ov(vw,c.R): need,why=2,'valu->permlane/dpp'
                if c.valu and c.base in('v_readfirstlane_b32','v_readlane_b32') and ov(vw,c.R): need,why=max(need,1),'valu->readlane'
                if c.valu and ov(sw,c.R): need,why=max(need,2),'valu sgpr->valu'
                if c.vmem and ov(sw,c.R): need,why=5,'valu sgpr->vmem'
                if c.salu and ov([r for r in sw if r!='vcc'],c.R): need,why=max(need,1),'valu sgpr->salu(pad)'
                if 'exec' in pW: need,why=5,'valu exec'
                if p.base.startswith('v_dot') and (c.valu or c.mfma or c.vmem or c.ds) and ov(vw,c.R+c.W):
                    same = c.base==p.base
                    srcab = sum((regs(o) for o in (c.ops[1:3])),[]) if same else []
                    if not same or ov(vw,srcab): need,why=max(need,3),'dot->other'
                if ('op_sel' in p.mods or p.op.endswith('_sdwa')) and c.valu and ov(vw,c.R): need,why=max(need,1),'opsel'
            if p.mfma:
                big={8:12,4:8}[p.passes]; mid={8:10,4:6}[p.passes]; war={8:7,4:3}[p.passes]
                if c.mfma:
                    if ov(p.D,c.A+c.B): need,why=big,'mfma D->mfma AB'
                    elif ov(p.D,c.C) and not (p.D==c.C and p.passes==c.passes): need,why=mid,'mfma D->mfma C partial'
                elif (c.valu or c.ds or c.vmem) and ov(p.D,c.R+c.W): need,why=big,'mfma D->valu/mem'
                if c.valu and ov(p.C,c.W): need,why=max(need,war),'mfma C WAR'
            if p.salu and 'm0' in pW and c.vmem and c.ldsdma: need,why=1,'m0->ldsdma'
            if p.vmem and getattr(p,'wide',False) and ov(p.data,c.W): need,why=2,'store data WAR'
            if need>dist: errs.append(f"{name}: hazard {why}: need {need} have {dist}\n    {p.text}\n    {c.text}")
            dist+=p.states
            if dist>=20: break
    return errs
import os
PROF=int(os.environ.get('PROF','0'))
PROF_OFF=0x5800000
class E:
    def __init__(s): s.L=[]; s.vi=0; s.vd=0; s.di=0; s.dd=0; s.nst=0
    def stamp(s,k):
        if PROF: s(f"s_memtime s[{68+2*k}:{69+2*k}]"); s.nst=max(s.nst,k+1)
    def __call__(s,t): s.L.append('  '+t)
    def label(s,l): s.L.append(l+':')
    def vm(s,t):
        if s.vi-s.vd>=62: s.wait(vm=s.vi-61)
        s(t); s.vi+=1; return s.vi
    def ds(s,t):
        if s.di-s.dd>=15: s.wait(ds=s.di-14)
        s(t); s.di+=1; return s.di
    def wait(s,vm=None,ds=None):
        p=[]
        if vm is not None and vm>s.vd:
            n=s.vi-vm; assert 0<=n<=63; p.append(f"vmcnt({n})"); s.vd=vm
        if ds is not None and ds>s.dd:
            n=s.di-ds; assert 0<=n<=15; p.append(f"lgkmcnt({n})"); s.dd=ds
        if p: s("s_waitcnt "+' '.join(p))
        return bool(p)
    def waitall(s): s.wait(vm=s.vi,ds=s.di)
    def lgkm0(s): s("s_waitcnt lgkmcnt(0)"); s.dd=s.di
    def nop(s,n): s(f"s_nop {n-1}")
class Module:
    def __init__(s): s.code=[]; s.kds=[]; s.launches=[]; s.errs=[]
    def add(s,name,e,vg,ag=0,sg=96):
        s.errs+=check_hazards(e.L,name)
        s.code.append(f".globl {name}\n.p2align 8\n.type {name},@function\n{name}:")
        if PROF:
            L=list(e.L); assert L[1].strip().startswith('s_cbranch_scc1');
            if L[1].strip().endswith('_end'): L[1]=f"  s_cbranch_scc1 {name}_exit"
            else: L[0:2],L[2:2]=[],[]; L[0:0]=["  s_nop 0","  s_nop 0"]+list(e.L[0:2])
            L[2:2]=["  s_memrealtime s[64:65]","  s_memtime s[66:67]"]+[f"  s_mov_b32 s{68+2*k}, 0" for k in range(12)]
            p=E(); p("s_mov_b64 exec, -1"); p("s_waitcnt vmcnt(0) lgkmcnt(0)"); p("s_memrealtime s[92:93]"); p("s_memtime s[94:95]")
            p("s_load_dwordx4 s[96:99], s[0:1], 64"); p("s_waitcnt lgkmcnt(0)")
            p("s_lshr_b32 s65, s96, 9"); p("s_and_b32 s65, s65, 31"); p("s_lshl_b32 s65, s65, 9"); p("s_add_u32 s65, s65, s2"); p("s_lshl_b32 s65, s65, 6")
            p(f"s_add_u32 s65, s65, {PROF_OFF}")
            p("s_mov_b32 s96, s98"); p("s_mov_b32 s97, s99"); p("s_mov_b32 s98, 0x10000000"); p("s_mov_b32 s99, 0x20000")
            p("v_mbcnt_lo_u32_b32 v1, -1, 0"); p("v_mbcnt_hi_u32_b32 v1, -1, v1"); p("v_lshrrev_b32 v0, 6, v0")
            p("v_lshlrev_b32 v2, 2, v0"); p("v_min_u32 v3, 1, v1"); p("v_lshl_or_b32 v2, v3, 31, v2"); p("v_mov_b32 v3, s92"); p("s_add_u32 s93, s65, 0x100000")
            p("buffer_store_dword v3, v2, s[96:99], s93 offen")
            p("v_mov_b32 v3, s66"); p("s_add_u32 s93, s65, 0x200000"); p("buffer_store_dword v3, v2, s[96:99], s93 offen")
            p(f"v_mov_b32 v3, s{68+2*int(os.environ.get('PWS','1'))}"); p("buffer_store_dword v3, v2, s[96:99], s93 offen offset:32")
            p("v_or_b32 v0, v0, v1")
            p("v_cmp_eq_u32 vcc, 0, v0"); p("s_and_b64 exec, exec, vcc"); p(f"s_cbranch_execz {name}_exit")
            p("v_mov_b32 v0, 0"); p("v_mov_b32 v2, s64"); p("v_mov_b32 v3, s92"); p("s_sub_u32 s94, s94, s66"); p("v_mov_b32 v4, s94"); p("s_getreg_b32 s93, hwreg(HW_REG_XCC_ID)"); p("v_mov_b32 v5, s93")
            p("buffer_store_dwordx4 v[2:5], v0, s[96:99], s65 offen")
            for q in range(3):
                for r in range(4):
                    k=4*q+r; p(f"s_sub_u32 s93, s{68+2*k}, s66"); p(f"s_cmp_eq_u32 s{68+2*k}, 0"); p("s_cselect_b32 s93, 0, s93"); p(f"v_mov_b32 v{6+4*q+r}, s93")
                p(f"buffer_store_dwordx4 v[{6+4*q}:{9+4*q}], v0, s[96:99], s65 offen offset:{16+16*q}")
            p.label(f"{name}_exit")
            e.L=L+p.L; sg=102
        s.code+=e.L; s.code.append("  s_endpgm")
        acc=(vg+3)//4*4; nfv=vg if ag==0 else acc+ag
        s.kds.append(f""".p2align 6
.amdhsa_kernel {name}
  .amdhsa_next_free_vgpr {nfv}
  .amdhsa_next_free_sgpr {sg}
  .amdhsa_accum_offset {acc}
  .amdhsa_group_segment_fixed_size 0
  .amdhsa_kernarg_size 80
  .amdhsa_user_sgpr_count 2
  .amdhsa_user_sgpr_kernarg_segment_ptr 1
  .amdhsa_system_sgpr_workgroup_id_x 1
.end_amdhsa_kernel""")
    def launch(s,name,grid,block,lds=0): s.launches.append(f"; @launch kernel={name} grid=({grid},1,1) block=({block},1,1) lds={lds}")
    def text(s,hdr):
        return hdr+"\n"+"\n".join(s.launches)+'\n.amdgcn_target "amdgcn-amd-amdhsa--gfx950"\n.text\n'+"\n".join(s.code)+'\n.section .rodata,"a"\n'+"\n".join(s.kds)+"\n"
def fl(x):
    import struct
    return "0x%08x"%struct.unpack('<I',struct.pack('<f',x))[0]
```

```python
from fw import *
from lay import *
from k_ln import *
import os
LDSW=73728
NT=' nt' if int(os.environ.get('K0NT','1')) else ''
NG0=int(os.environ.get('K0NG','124'))
def side_entry(e,N,label,first,table):
    e.label(label)
    e("s_cmp_ge_u32 s2, 256"); e(f"s_cbranch_scc1 {N}_end")
    e("v_cmp_gt_u32 vcc, 256, v0"); e("s_and_b64 exec, exec, vcc"); e(f"s_cbranch_execz {N}_end")
    e("s_mov_b32 s44, 256"); lo=first
    for cnt,u0 in table:
        e(f"s_add_u32 s45, s2, {u0-lo}" if u0>=lo else f"s_sub_u32 s45, s2, {lo-u0}"); e(f"s_cmp_ge_u32 s2, {lo}"); e("s_cselect_b32 s44, s45, s44"); lo+=cnt
    e(f"s_cmp_ge_u32 s2, {lo}"); e(f"s_cbranch_scc1 {N}_end")
    e("s_mov_b32 s45, 0"); e("s_branch prep_common")
def k0(mod):
    e=E(); N='prep_kernel'
    e("s_cmp_ge_u32 s2, 256"); e(f"s_cbranch_scc1 {N}_end")
    e("s_add_u32 s44, s2, 216"); e("s_sub_u32 s45, s2, 40"); e("s_cmp_lt_u32 s2, 40"); e("s_cselect_b32 s44, s44, s45")
    e(f"s_cmp_lt_u32 s2, {40+NG0}"); e("s_cselect_b32 s44, s44, 256"); e("s_mov_b32 s45, 1")
    e.label("prep_common")
    e("s_load_dwordx4 s[36:39], s[0:1], 0")
    e("s_load_dwordx2 s[40:41], s[0:1], 16")
    e("s_load_dwordx4 s[52:55], s[0:1], 32")
    e("s_load_dwordx2 s[48:49], s[0:1], 48")
    e("s_load_dwordx2 s[50:51], s[0:1], 72")
    e("v_and_b32 v1, 63, v0"); e("v_lshrrev_b32 v2, 6, v0"); e("v_and_b32 v3, 7, v1")
    e("v_readfirstlane_b32 s20, v2")
    e("s_lshr_b32 s59, s2, 3"); e("s_lshl_b32 s59, s59, 2"); e("s_add_u32 s59, s59, s20"); code_prefetch(e,'qkv_kernel',59,44,'prep')
    e("v_lshrrev_b32 v4, 3, v1")
    e("v_mul_u32_u24 v5, 1152, v3"); e("v_lshl_add_u32 v5, v4, 4, v5")
    e("s_mov_b32 s21, 0x3f803f80")
    e("s_mul_i32 s24, s20, 18432")
    e("s_mul_i32 s22, s2, 9216"); e("s_mul_i32 s23, s20, 384"); e("s_add_u32 s22, s22, s23")
    e("s_cmp_eq_u32 s20, 3"); e(f"s_cselect_b32 s22, {XB}, s22")
    e.lgkm0()
    srd_ptr(e,16,36,XB)
    srd_ptr(e,12,50,WSSIZE)
    srd_ptr(e,8,48,DF*D*2)
    e("s_cmp_eq_u32 s45, 0"); e(f"s_cbranch_scc1 {N}_nox")
    for i in range(3): e(f"buffer_load_dwordx4 v[{8+4*i}:{11+4*i}], v5, s[16:19], s22 offen offset:{128*i}")
    e.label(f"{N}_nox")
    e("s_cmp_lt_u32 s44, 144"); e(f"s_cbranch_scc1 {N}_ldG")
    e("s_cmp_lt_u32 s44, 216"); e(f"s_cbranch_scc1 {N}_ldD")
    e("s_cmp_lt_u32 s44, 243"); e(f"s_cbranch_scc1 {N}_ldQ")
    e("s_cmp_lt_u32 s44, 252"); e(f"s_cbranch_scc1 {N}_ldWo")
    e("s_cmp_eq_u32 s44, 256"); e(f"s_cbranch_scc1 {N}_none")
    e("s_cmp_eq_u32 s44, 252"); e(f"s_cbranch_scc1 {N}_zero")
    e("v_mov_b32 v24, s21"); e("v_lshlrev_b32 v20, 2, v1"); e("v_cmp_gt_u32 vcc, 16, v0"); e("s_and_saveexec_b64 s[26:27], vcc"); e(f"s_cbranch_execz {N}_ones1")
    e(f"s_mov_b32 s25, {WS['VT'][0]+XB}"); e("buffer_store_dword v24, v20, s[12:15], s25 offen sc1")
    e.label(f"{N}_ones1"); e("s_mov_b64 exec, s[26:27]")
    e(f"s_branch {N}_none")
    e.label(f"{N}_zero")
    for r in range(4): e(f"v_mov_b32 v{24+r}, 0")
    e("v_lshlrev_b32 v20, 4, v1")
    e("s_mul_i32 s25, s20, 27648"); e(f"s_add_u32 s25, s25, {WS['WQKV'][0]+(13*144+2)*1024}"); e("s_mov_b32 s26, 0")
    e("s_mul_i32 s27, s20, 9216"); e(f"s_add_u32 s27, s27, {WS['WQKV'][0]+(13*144+108)*1024}")
    e.label(f"{N}_zerol")
    e("buffer_store_dwordx4 v[24:27], v20, s[12:15], s25 offen sc1"); e("buffer_store_dwordx4 v[24:27], v20, s[12:15], s27 offen sc1"); e("s_add_u32 s25, s25, 3072"); e("s_add_u32 s27, s27, 1024")
    e("s_add_u32 s26, s26, 1"); e("s_cmp_lt_u32 s26, 9"); e(f"s_cbranch_scc1 {N}_zerol")
    e.label(f"{N}_none")
    e("s_waitcnt vmcnt(0)"); e(f"s_branch {N}_ln")
    e.label(f"{N}_ldQ")
    srd_ptr(e,8,38,D*3*D*2); e("s_mov_b32 s28, 3456"); e("s_sub_u32 s26, s44, 216"); e(f"s_branch {N}_ldG2")
    e.label(f"{N}_ldG")
    e("s_cmp_ge_u32 s44, 72"); e("s_cselect_b32 s8, s54, s52"); e("s_cselect_b32 s9, s55, s53"); e("s_cselect_b32 s26, 72, 0"); e("s_cselect_b32 s27, 1, 0")
    e("s_sub_u32 s26, s44, s26"); e("s_mov_b32 s28, 9216")
    e.label(f"{N}_ldG2")
    e("v_mul_lo_u32 v20, v4, s28"); e("v_lshl_add_u32 v20, v3, 4, v20")
    e("s_lshl_b32 s25, s26, 7"); e("s_mul_i32 s29, s20, 144"); e("s_mul_i32 s29, s29, s28"); e("s_add_u32 s25, s25, s29"); e("s_lshl_b32 s29, s28, 3")
    for i in range(18):
        e(f"s_add_u32 m0, s24, {1024*i}")
        if i: e("s_add_u32 s25, s25, s29")
        else: e.nop(1)
        e(f"buffer_load_dwordx4 v20, s[8:11], s25 offen{NT} lds")
    e(f"s_branch {N}_w18")
    e.label(f"{N}_ldD")
    e("s_sub_u32 s26, s44, 144"); e("s_mul_i32 s25, s26, 73728"); e("s_lshr_b32 s29, s20, 1"); e("s_mul_i32 s29, s29, 36864"); e("s_add_u32 s25, s25, s29")
    e("s_and_b32 s29, s20, 1"); e("s_mul_i32 s29, s29, 576"); e("s_add_u32 s25, s25, s29")
    e("v_cmp_le_u32 vcc, 36, v1"); e("v_lshlrev_b32 v23, 4, v1"); e("v_add_u32 v24, 576, v23"); e("v_subrev_u32 v22, 36, v1")
    e("v_cndmask_b32 v23, v23, v24, vcc"); e("v_cndmask_b32 v22, v1, v22, vcc")
    for i in range(18):
        e(f"s_add_u32 m0, s24, {1024*i}"); e.nop(1)
        e(f"buffer_load_dwordx4 v23, s[8:11], s25 offen{NT} lds")
        if i<17:
            e("v_add_u32 v22, 28, v22"); e("v_cmp_le_u32 vcc, 36, v22"); e("v_add_u32 v23, 1600, v23"); e("v_add_u32 v24, 576, v23")
            e("v_subrev_u32 v25, 36, v22"); e("v_cndmask_b32 v23, v23, v24, vcc"); e("v_cndmask_b32 v22, v22, v25, vcc")
    e(f"s_branch {N}_w18")
    e.label(f"{N}_ldWo")
    srd_ptr(e,8,40,D*D*2); e("s_sub_u32 s26, s44, 243")
    e("s_lshl_b32 s31, s26, 6"); e("s_lshl_b32 s29, s20, 4"); e("s_add_u32 s31, s31, s29")
    e("v_mov_b32 v21, s31"); e("v_mov_b32 v22, v1"); e("s_mov_b32 s30, 0")
    e.label(f"{N}_wol")
    e("v_lshrrev_b32 v26, 4, v21"); e("v_mul_u32_u24 v26, 18, v26")
    e("v_and_b32 v27, 3, v21"); e("v_add_u32 v26, v26, v27")
    e("v_bfe_u32 v27, v21, 3, 1"); e("v_lshl_add_u32 v26, v27, 2, v26")
    e("v_bfe_u32 v27, v21, 2, 1"); e("v_lshl_add_u32 v26, v27, 3, v26")
    e("v_bfe_u32 v27, v21, 1, 5"); e("v_mul_u32_u24 v27, 18, v27"); e("v_and_b32 v28, 1, v21")
    e("v_cmp_le_u32 vcc, 512, v21"); e("v_add3_u32 v27, v27, v28, 16")
    e("s_add_u32 m0, s24, s30")
    e("v_cndmask_b32 v26, v26, v27, vcc")
    e("v_mul_u32_u24 v23, 1152, v26"); e("v_lshl_add_u32 v23, v22, 4, v23")
    e(f"buffer_load_dwordx4 v23, s[8:11], 0 offen{NT} lds")
    e("v_add_u32 v22, 64, v22"); e("v_cmp_le_u32 vcc, 72, v22"); e("v_subrev_u32 v24, 72, v22"); e("s_add_u32 s30, s30, 1024")
    e("v_cndmask_b32 v22, v22, v24, vcc"); e("v_addc_co_u32 v21, vcc, 0, v21, vcc")
    e("s_cmp_lt_u32 s30, 18432"); e(f"s_cbranch_scc1 {N}_wol")
    e.label(f"{N}_w18")
    e("s_waitcnt vmcnt(18)")
    e.label(f"{N}_ln"); e.stamp(0)
    e("s_cmp_eq_u32 s45, 0"); e(f"s_cbranch_scc1 {N}_lnskip")
    e("v_lshlrev_b32 v6, 9, v4"); e("v_lshl_add_u32 v6, v3, 4, v6")
    e("s_lshr_b32 s29, s2, 2"); e("s_mul_i32 s29, s29, 36864"); e("s_mul_i32 s33, s20, 12288"); e("s_add_u32 s29, s29, s33")
    e("s_and_b32 s33, s2, 3"); e("s_lshl_b32 s33, s33, 7"); e("s_add_u32 s29, s29, s33")
    e("s_cmp_eq_u32 s20, 3"); e(f"s_cbranch_scc1 {N}_zf")
    e(f"s_add_u32 s33, s29, {WS['X0'][0]}")
    for i in range(3):
        e(f"buffer_store_dwordx4 v[{8+4*i}:{11+4*i}], v6, s[12:15], s33 offen sc1")
        if i<2: e("s_add_u32 s33, s33, 4096")
    e("v_mov_b32 v28, 0"); e("v_mov_b32 v29, 0")
    for r in range(12):
        e(f"v_dot2c_f32_bf16 v28, s21, v{8+r}"); e(f"v_dot2c_f32_bf16 v29, v{8+r}, v{8+r}")
    e("v_min_u32 v7, 1, v4"); e("v_lshlrev_b32 v7, 31, v7"); e("v_lshl_or_b32 v7, v3, 3, v7")
    red8(e,28,31); red8(e,29,31)
    e("s_lshl_b32 s33, s20, 14"); e("s_lshl_b32 s34, s2, 6"); e("s_add_u32 s33, s33, s34"); e(f"s_add_u32 s33, s33, {WS['ST2'][0]}")
    e("buffer_store_dwordx2 v[28:29], v7, s[12:15], s33 offen sc1")
    e("s_waitcnt vmcnt(4)"); e(f"s_branch {N}_ln2")
    e.label(f"{N}_zf")
    e("v_mov_b32 v8, 0"); e("v_mov_b32 v9, 0")
    e("v_lshlrev_b32 v7, 14, v4"); e("v_lshl_or_b32 v7, v3, 3, v7"); e("s_lshl_b32 s33, s2, 6"); e(f"s_add_u32 s33, s33, {WS['ST2'][0]+3*16384}"); e("s_add_u32 s34, s33, 81920")
    e("buffer_store_dwordx2 v[8:9], v7, s[12:15], s33 offen sc1"); e("buffer_store_dwordx2 v[8:9], v7, s[12:15], s34 offen sc1")
    e("s_waitcnt vmcnt(2)"); e(f"s_branch {N}_ln2")
    e.label(f"{N}_lnskip"); e("s_waitcnt vmcnt(0)")
    e.label(f"{N}_ln2"); e.stamp(1)
    e("s_cmp_ge_u32 s44, 252"); e(f"s_cbranch_scc1 {N}_end")
    e("v_lshrrev_b32 v20, 4, v1"); e("v_bfe_u32 v21, v1, 2, 2"); e("v_and_b32 v22, 3, v1")
    e("v_lshrrev_b32 v23, 1, v20"); e("v_and_b32 v24, 1, v20")
    e("v_lshlrev_b32 v31, 4, v1")
    e("s_cmp_lt_u32 s44, 144"); e(f"s_cbranch_scc1 {N}_pG")
    e("s_cmp_lt_u32 s44, 216"); e(f"s_cbranch_scc1 {N}_pD")
    e("s_cmp_ge_u32 s44, 243"); e(f"s_cbranch_scc1 {N}_pWo")
    e("s_lshl_b32 s29, s26, 4"); e("v_bfe_u32 v25, v1, 2, 3"); e("v_add_u32 v25, s29, v25")
    for ch in range(2):
        if ch: e("v_add_u32 v25, 8, v25")
        e("v_mul_u32_u24 v26, 456, v25"); e("v_lshrrev_b32 v26, 16, v26")
        e("v_mul_u32_u24 v27, 144, v26"); e("v_sub_u32 v27, v25, v27")
        e("v_mul_u32_u24 v32, 7282, v27"); e("v_lshrrev_b32 v32, 16, v32")
        e("v_mul_u32_u24 v33, 9, v32"); e("v_sub_u32 v33, v27, v33")
        e("v_cmp_lt_u32 vcc, 4, v33"); e("v_add_u32 v34, 3, v33"); e("v_lshrrev_b32 v36, 3, v32")
        e("v_cndmask_b32 v34, v33, v34, vcc")
        e("v_and_b32 v35, 1, v34"); e("v_lshlrev_b32 v35, 3, v35"); e("v_bfe_u32 v37, v34, 1, 1"); e("v_lshl_add_u32 v35, v37, 2, v35")
        e("v_bfe_u32 v37, v34, 3, 1"); e("v_lshl_add_u32 v35, v37, 4, v35")
        e("v_lshl_add_u32 v36, v26, 1, v36"); e("v_lshl_add_u32 v36, v36, 2, 3")
        e("v_and_b32 v37, 3, v32"); e("v_lshlrev_b32 v37, 3, v37"); e("v_bfe_u32 v38, v32, 2, 1"); e("v_lshl_add_u32 v37, v38, 2, v37")
        e("v_lshl_add_u32 v32, v26, 4, v32"); e("v_mul_u32_u24 v38, 43, v32"); e("v_lshrrev_b32 v38, 7, v38"); e("v_cmp_gt_u32 vcc, 12, v32"); e("v_add_u32 v38, v38, v32")
        e("v_add_u32 v32, 4, v32"); e("v_cndmask_b32 v32, v32, v38, vcc")
        e("v_cmp_eq_u32 vcc, 4, v33"); e("v_lshrrev_b32 v38, 3, v27"); e("v_add_u32 v38, 36, v38")
        e("v_cndmask_b32 v32, v32, v36, vcc"); e("v_cndmask_b32 v35, v35, v37, vcc")
        e("v_cmp_eq_u32 vcc, 2, v26"); e("v_and_b32 v37, 7, v27"); e("v_lshlrev_b32 v37, 2, v37")
        e("v_cndmask_b32 v32, v32, v38, vcc"); e("v_cndmask_b32 v35, v35, v37, vcc")
        e("v_lshrrev_b32 v36, 2, v32"); e("v_mul_u32_u24 v36, 144, v36"); e("v_and_b32 v32, 3, v32"); e("v_cmp_eq_u32 vcc, 3, v32")
        e("v_mov_b32 v37, 0xc00"); e("v_mov_b32 v38, 0x400"); e("v_cndmask_b32 v33, 0, 1, vcc"); e(f"v_cndmask_b32 v{18+ch}, v37, v38, vcc")
        e("v_mul_u32_u24 v33, 105, v33"); e("v_add3_u32 v32, v32, v36, v33")
        e("v_add_u32 v35, v35, v22"); e("v_lshl_add_u32 v35, v23, 5, v35"); e("v_lshlrev_b32 v35, 4, v35")
        e(f"v_lshl_add_u32 v{28+ch}, v32, 10, v35")
    e(f"s_mov_b32 s30, {WS['WQKV'][0]}"); e(f"s_branch {N}_pG2")
    e.label(f"{N}_pG")
    e("s_lshl_b32 s29, s26, 2"); e("v_add_u32 v25, s29, v24")
    e("v_bfe_u32 v35, v1, 2, 1"); e("v_lshlrev_b32 v35, 3, v35"); e("v_bfe_u32 v36, v1, 3, 1"); e("v_lshl_add_u32 v35, v36, 2, v35"); e("v_add_u32 v35, v35, v22")
    e("s_lshl_b32 s29, s27, 4"); e("v_add_u32 v35, s29, v35"); e("v_lshl_add_u32 v35, v23, 5, v35"); e("v_lshlrev_b32 v35, 4, v35")
    e("v_mov_b32 v37, 0x400"); e("v_mov_b32 v38, 0x1000")
    for ch in range(2):
        if ch: e("v_add_u32 v25, 2, v25")
        e("v_mul_u32_u24 v26, 7282, v25"); e("v_lshrrev_b32 v26, 16, v26"); e("v_mul_u32_u24 v27, 9, v26"); e("v_sub_u32 v27, v25, v27")
        e("v_cmp_gt_u32 vcc, 4, v27"); e("v_mul_u32_u24 v32, 36, v27"); e("v_mul_u32_u24 v26, 324, v26")
        e("v_cndmask_b32 v32, v32, v27, vcc"); e(f"v_cndmask_b32 v{18+ch}, v37, v38, vcc"); e("v_add_u32 v32, v32, v26")
        e(f"v_lshl_add_u32 v{28+ch}, v32, 10, v35")
    e(f"s_mov_b32 s30, {WS['WGU'][0]}")
    e.label(f"{N}_pG2")
    e.vi=e.vd=0; e.di=e.dd=0
    e("s_mul_i32 s29, s20, 9")
    for ch in range(2): e(f"v_mul_lo_u32 v32, v{18+ch}, s29"); e(f"v_add_u32 v{28+ch}, v{28+ch}, v32")
    e("v_lshl_add_u32 v26, v23, 3, v21"); e("v_lshlrev_b32 v26, 7, v26"); e("v_lshl_add_u32 v26, v24, 5, v26"); e("v_lshl_add_u32 v26, v22, 3, v26"); e("v_add_u32 v26, s24, v26")
    toks={}
    for s_ in range(9):
        for ch in range(2):
            r=48+8*s_+4*ch; o=s_*2048+64*ch
            e.ds(f"ds_read_b64_tr_b16 v[{r}:{r+1}], v26 offset:{o}"); toks[s_,ch]=e.ds(f"ds_read_b64_tr_b16 v[{r+2}:{r+3}], v26 offset:{o+512}")
    e("v_mov_b32 v40, 0"); e("v_mov_b32 v41, 0")
    e("v_and_b32 v27, 31, v1"); e("v_lshlrev_b32 v27, 3, v27"); e(f"v_add_u32 v27, {LDSW+256}, v27"); e("s_lshl_b32 s29, s20, 8"); e("v_add_u32 v32, s29, v27")
    for s_ in range(9):
        for ch in range(2):
            e.wait(ds=toks[s_,ch])
            for r in range(4): e(f"v_dot2c_f32_bf16 v{40+ch}, s21, v{48+8*s_+4*ch+r}")
    e.nop(3)
    e("v_mov_b32 v42, v40"); e("v_mov_b32 v43, v41"); e.nop(2)
    e("v_permlane32_swap_b32 v42, v40"); e("v_permlane32_swap_b32 v43, v41"); e("v_add_f32 v40, v40, v42"); e("v_add_f32 v41, v41, v43")
    e.ds("ds_write_b64 v32, v[40:41]"); e.lgkm0(); e("s_barrier")
    for w in range(4): t=e.ds(f"ds_read_b64 v[{32+2*w}:{33+2*w}], v27 offset:{256*w}")
    e("s_mov_b32 s35, 0x00003f80"); e("s_mov_b32 s36, 0x3f800000")
    e.wait(ds=t)
    for ch in range(2):
        e(f"v_add_f32 v{32+ch}, v{32+ch}, v{34+ch}"); e(f"v_add_f32 v{36+ch}, v{36+ch}, v{38+ch}"); e(f"v_add_f32 v{32+ch}, v{32+ch}, v{36+ch}")
        e(f"v_mul_f32 v{40+ch}, {fl(-1.0/D)}, v{32+ch}")
    for s_ in range(9):
        for ch in range(2):
            x=48+8*s_+4*ch
            for r in range(4):
                e(f"v_dot2_f32_bf16 v{32+2*r}, v{x+r}, s35, v{40+ch}"); e(f"v_dot2_f32_bf16 v{33+2*r}, v{x+r}, s36, v{40+ch}")
            for r in range(4): e(f"v_cvt_pk_bf16_f32 v{x+r}, v{32+2*r}, v{33+2*r}")
            e(f"buffer_store_dwordx4 v[{x}:{x+3}], v{28+ch}, s[12:15], s30 offen sc1"); e(f"v_add_u32 v{28+ch}, v{28+ch}, v{18+ch}")
    e(f"s_branch {N}_end")
    def rd_st(lst,rowb):
        e.vi=e.vd=0; e.di=e.dd=0; toks=[]
        for n,(b,o,_) in enumerate(lst):
            e.ds(f"ds_read_b64_tr_b16 v[{48+4*n}:{49+4*n}], v{b} offset:{o}")
            toks.append(e.ds(f"ds_read_b64_tr_b16 v[{50+4*n}:{51+4*n}], v{b} offset:{o+4*rowb}"))
        for n,(b,o,d) in enumerate(lst):
            if isinstance(d,tuple): e(f"s_add_u32 s33, s{d[0]}, {d[1]}")
            else: e(f"s_add_u32 s33, s30, {d}")
            e.wait(ds=toks[n])
            e(f"buffer_store_dwordx4 v[{48+4*n}:{51+4*n}], v31, s[12:15], s33 offen sc1")
    e.label(f"{N}_pWo")
    e("v_lshl_add_u32 v26, v23, 3, v21"); e("v_mul_u32_u24 v26, 1152, v26"); e("v_add_u32 v26, s24, v26")
    e("v_and_b32 v27, 1, v22"); e("v_lshl_add_u32 v26, v27, 4, v26"); e("v_lshrrev_b32 v27, 1, v22"); e("v_lshl_add_u32 v26, v27, 3, v26"); e("v_lshl_add_u32 v28, v24, 5, v26")
    e("s_lshl_b32 s29, s26, 2"); e("s_add_u32 s29, s29, s20"); e("s_mul_i32 s30, s29, 3072"); e(f"s_add_u32 s30, s30, {WS['WO'][0]}")
    rd_st([(28,64*B,((B//3)*108+B%3)*1024) for B in range(18)],1152); e(f"s_branch {N}_end")
    e.label(f"{N}_pD")
    e("v_lshl_add_u32 v26, v20, 3, v21"); e("v_mul_u32_u24 v26, 576, v26"); e("v_add_u32 v26, s24, v26")
    e("v_lshl_add_u32 v28, v22, 4, v26"); e("v_lshl_add_u32 v29, v22, 3, v26")
    e("s_lshr_b32 s29, s20, 1"); e("s_and_b32 s34, s20, 1")
    e("s_lshl_b32 s33, s26, 1"); e("s_add_u32 s29, s29, s33")
    e("s_mul_i32 s33, s29, 1821"); e("s_lshr_b32 s33, s33, 16")
    e("s_mul_i32 s35, s33, 36"); e("s_sub_u32 s29, s29, s35")
    e("s_lshl_b32 s34, s34, 3"); e("s_add_u32 s34, s33, s34"); e(f"s_mul_i32 s34, s34, {324*1024}"); e(f"s_add_u32 s34, s34, {WS['WD'][0]}")
    e("s_mul_i32 s30, s29, 5120"); e("s_add_u32 s30, s30, s34"); e("s_lshl_b32 s35, s29, 11"); e("s_add_u32 s35, s35, s34"); e(f"s_add_u32 s35, s35, {36*1024}")
    for p in range(4):
        e(f"s_sub_u32 s{56+p}, {p+3}, s33"); e(f"s_and_b32 s{56+p}, s{56+p}, 3"); e(f"s_mul_i32 s60, s{56+p}, {72*1024}"); e("s_add_u32 s60, s60, s35")
        e(f"s_lshl_b32 s61, s{56+p}, 11"); e(f"s_add_u32 s61, s61, s30"); e(f"s_cmp_ge_u32 s{56+p}, 2"); e(f"s_cselect_b32 s{56+p}, s60, s61")
    lst=[]
    for n2 in range(2):
        for j in range(9):
            if j<8: lst.append((28,(144*n2+32*(j>>1)+4*(j&1))*2,(56+(j>>1),(n2*4*324+(j&1))*1024)))
            else: lst.append((29,(144*n2+128)*2,(n2*4*324+4)*1024))
    rd_st(lst,576)
    e.label(f"{N}_end"); e.stamp(2)
    mod.add(N,e,vg=120,sg=64)
    return (N,256,256,LDSW+256+1024)
```

```python
from fw import *
from lay import *
import math, os
from k0 import side_entry, NG0
QS=DH**-0.5*math.log2(math.e)
def env(n,d): return int(os.environ.get(n,d))
def prologue_common(e,N,nwg,side=False):
    e(f"s_cmp_ge_u32 s2, {nwg}"); e(f"s_cbranch_scc1 {N}_side" if side else f"s_cbranch_scc1 {N}_end")
    e("s_load_dwordx2 s[4:5], s[0:1], 72")
    e("v_and_b32 v1, 63, v0"); e("v_lshrrev_b32 v2, 6, v0"); e("v_lshlrev_b32 v3, 4, v1")
    e("v_readfirstlane_b32 s20, v2")
    e("s_and_b32 s16, s2, 7"); e("s_lshr_b32 s17, s2, 3")
def k1(mod):
    e=E(); N='qkv_kernel'
    ACC=16; WF=80; NWF=6; TMP=104; RS=120; STT=136
    LA=env('K1LA',4); LEAD=env('K1LEAD',22); PRO=env('K1PRO',18); BUD=env('K1BUD',20)
    prologue_common(e,N,224,True)
    e("s_lshr_b32 s18, s16, 1"); e("s_lshl_b32 s18, s18, 2"); e("s_and_b32 s19, s17, 3"); e("s_add_u32 s18, s18, s19")
    e("s_and_b32 s19, s16, 1"); e("s_mul_i32 s19, s19, 7"); e("s_lshr_b32 s17, s17, 2"); e("s_add_u32 s19, s19, s17")
    e("s_lshl_b32 s18, s18, 2"); e("s_add_u32 s18, s18, s20")
    e(f"s_mul_i32 s21, s18, 36864"); e(f"s_add_u32 s21, s21, {WS['X0'][0]}")
    e(f"s_mul_i32 s22, s19, {144*1024}"); e(f"s_add_u32 s22, s22, {WS['WQKV'][0]}")
    e("s_lshl_b32 s31, s20, 10"); e("s_lshl_b32 s32, s20, 11"); e("s_mul_i32 s33, s20, 3072")
    e.lgkm0()
    srd_ptr(e,8,4,WSSIZE)
    sizes=[4,8]+[12]*11; start=[sum(sizes[:i]) for i in range(len(sizes)+1)]; assert start[-1]==144
    tokW={}; tokX={}; ts=[0]
    def mk_items():
        items=[]; lastd=-99
        for c,sz in enumerate(sizes):
            per=sz//4; sr=30+per
            for i in range(per):
                def f(c=c,i=i,sr=sr):
                    if i==0: e(f"s_add_u32 m0, s{sr}, {start[c]*1024}"); e(f"s_add_u32 s23, m0, s22")
                    tokW[c]=e.vm(f"buffer_load_dwordx4 v3, s[8:11], s23 offen offset:{1024*i} lds")
                lastd=max(lastd+0.01,start[c]-LA-1-(per-1-i)*4); items.append((lastd,f))
        for ks in range(36):
            def f(ks=ks):
                tokX[ks]=e.vm(f"buffer_load_dwordx4 a[{4*ks}:{4*ks+3}], v3, s[8:11], s21 offen offset:{1024*(ks%4)}")
                if ks%4==3: e("s_add_u32 s21, s21, 4096")
            items.append((3*ks,f))
        for i in range(8):
            def f(i=i): ts[0]=e.vm(f"buffer_load_dwordx2 v[{STT+2*i}:{STT+2*i+1}], v8, s[8:11], s30 offen"); e("s_add_u32 s30, s30, 16384")
            items.append((60+4*i+0.5,f))
        items.sort(key=lambda x:x[0]); return items
    items0=mk_items()
    while items0[0][0]<PRO: items0.pop(0)[1]()
    nleft=len(items0)
    e("v_add_u32 v4, 0x10000, v3"); e("v_add_u32 v5, 0x20000, v3")
    e("v_and_b32 v6, 31, v1"); e("v_lshrrev_b32 v7, 5, v1"); e("v_lshlrev_b32 v8, 17, v7"); e("v_lshl_or_b32 v8, v6, 3, v8")
    e("s_lshl_b32 s30, s18, 8"); e(f"s_add_u32 s30, s30, {WS['ST2'][0]}")
    e("s_cmp_ge_u32 s19, 9"); e(f"s_cbranch_scc1 {N}_v")
    st=(e.vi,e.vd,e.di,e.dd,dict(tokW),dict(tokX))
    seq=[(ks,j) for ks in range(36) for j in range(3)]+[(ks,3) for ks in range(36)]
    def V(s,c=4): return (c,lambda: e(s))
    def stats_ops():
        o=[(4,lambda: e.wait(vm=ts[0]))]
        for i in range(1,8): o+=[V(f"v_add_f32 v{STT}, v{STT}, v{STT+2*i}"),V(f"v_add_f32 v{STT+1}, v{STT+1}, v{STT+2*i+1}")]
        for s_ in [f"v_mov_b32 v12, v{STT}",f"v_mov_b32 v14, v{STT+1}","s_nop 1",f"v_permlane32_swap_b32 v12, v{STT}",f"v_permlane32_swap_b32 v14, v{STT+1}",
                   f"v_add_f32 v12, v12, v{STT}",f"v_add_f32 v14, v14, v{STT+1}",f"v_mul_f32 v12, {fl(1.0/D)}, v12",f"v_mul_f32 v14, {fl(1.0/D)}, v14",
                   "v_fma_f32 v14, -v12, v12, v14","v_max_f32 v14, 0, v14",f"v_add_f32 v14, {fl(1e-5)}, v14","v_rsq_f32 v12, v14"]: o.append(V(s_))
        return o
    def mainloop(normal,pre,epi):
        items=mk_items(); items=items[len(items)-nleft:]
        rt={}
        def rd(n):
            a=n*1024; b=WF+4*(n%NWF)
            rt[n]=e.ds(f"ds_read_b128 v[{b}:{b+3}], v{3+(a>>16)} offset:{a&0xffff}")
        e.stamp(0); e.wait(vm=tokW[0]); e("s_barrier"); e.stamp(1)
        for n in range(LA): rd(n)
        fq=[]
        for n,(ks,j) in enumerate(seq):
            m=n+LA; used=0
            if m<144 and m in start:
                c=start.index(m)
                while any(it[0]<=start[c]-LA for it in items): items.pop(0)[1]()
                e.wait(vm=tokW[c]); e("s_barrier"); used+=8
                if c in(4,7): e.stamp({4:2,7:3}[c])
            first = n<108 and j==0
            if first:
                while any(it[0]<=3*ks for it in items): items.pop(0)[1]()
            if n==94: fq+=stats_ops()+pre
            if n==108: e.stamp(4)
            if n==111:
                for jj in range(3): fq+=epi(jj)
            b=WF+4*(n%NWF)
            if e.wait(vm=tokX[ks] if first else None, ds=rt[n]): used+=4
            w=f"v[{b}:{b+3}]"; x=f"a[{4*ks}:{4*ks+3}]"; d=f"v[{ACC+16*j}:{ACC+16*j+15}]"
            a,bb=(x,w) if normal else (w,x)
            e(f"v_mfma_f32_32x32x16_bf16 {d}, {a}, {bb}, {d if ks else 0}")
            if m<144: rd(m); used+=4
            if items and (items[0][0]<n+LEAD or n>=96): items.pop(0)[1](); used+=8
            elif not items or n<108:
                while fq and used+fq[0][0]<=BUD: c_,f=fq.pop(0); f(); used+=c_
        assert not items
        e.stamp(5)
        for c_,f in fq: f()
        e.stamp(6)
    def scale_pack(j,mul):
        A=ACC+16*j; T=TMP+8*(j&1); o=[]
        for h in range(2):
            o+=[V(f"v_mul_f32 v{A+8*h+r}, {mul(8*h+r)}, v{A+8*h+r}") for r in range(8)]
            o+=[V(f"v_cvt_pk_bf16_f32 v{T+4*h+r}, v{A+8*h+2*r}, v{A+8*h+2*r+1}") for r in range(4)]
        return o
    pre=[V("s_mul_i32 s24, s19, 3"),V("s_lshl_b32 s25, s19, 2"),V("s_sub_u32 s25, s25, 4"),V("s_cmp_lt_u32 s19, 4"),V("s_cselect_b32 s24, s24, s25"),
         V("s_lshl_b32 s26, s18, 10"),V(f"s_add_u32 s26, s26, {WS['QM'][0]}")]
    def epi_main(j):
        T=TMP+8*(j&1)
        o=[V(f"s_add_u32 s27, s24, {j}"),V("s_cmp_ge_u32 s27, 16"),V(f"s_cselect_b32 s25, 1.0, {fl(QS)}"),V("v_mul_f32 v13, s25, v12"),
           V("s_lshl_b32 s28, s27, 17"),V("s_add_u32 s28, s28, s26"),V("s_add_u32 s29, s28, 0x10000")]
        sp=scale_pack(j,lambda r:"v13")
        o+=sp[:12]+[(8,lambda: e.vm(f"buffer_store_dwordx4 v[{T}:{T+3}], v3, s[8:11], s28 offen sc1"))]
        o+=sp[12:]+[(8,lambda: e.vm(f"buffer_store_dwordx4 v[{T+4}:{T+7}], v3, s[8:11], s29 offen sc1"))]
        return o
    mainloop(False,pre,epi_main)
    e("s_cmp_lt_u32 s19, 4"); e(f"s_cbranch_scc1 {N}_x")
    e.nop(4)
    for c_,f in epi_main(3): f()
    e(f"s_branch {N}_end")
    e.label(f"{N}_x")
    e("s_cmp_ge_u32 s19, 2"); e(f"s_cselect_b32 s25, 1.0, {fl(QS)}"); e("v_mul_f32 v13, s25, v12")
    e("v_lshlrev_b32 v6, 2, v6"); e("v_lshl_add_u32 v6, v7, 16, v6")
    e("s_lshl_b32 s28, s19, 17"); e("s_lshl_b32 s29, s18, 7"); e("s_add_u32 s28, s28, s29"); e(f"s_add_u32 s28, s28, {WS['QX'][0]}"); e.nop(2)
    for c_,f in scale_pack(3,lambda r:"v13"): f()
    for m_ in range(8):
        e(f"buffer_store_dword v{TMP+8+m_}, v6, s[8:11], s28 offen sc1")
        if m_<7: e("s_add_u32 s28, s28, 8192")
    e(f"s_branch {N}_end")
    assert WS['KM'][0]-WS['QM'][0]==1<<21 and WS['KX'][0]-WS['QX'][0]==1<<18
    e.label(f"{N}_v"); e.vi,e.vd,e.di,e.dd,t1,t2=st; tokW.update(t1); tokX.update(t2)
    tr=[0]
    def rsr(a):
        def f(): tr[0]=e.ds(f"ds_read_b128 v[{RS+4*a}:{RS+4*a+3}], v9 offset:{32*a}")
        return (4,f)
    pre=[V("s_lshl_b32 s28, s20, 7"),V("s_add_u32 s28, s28, 147456"),V("v_lshl_add_u32 v8, v6, 2, s28"),(4,lambda: e.ds("ds_write_b32 v8, v12")),V("v_lshl_add_u32 v9, v7, 4, s28")]
    pre+=[rsr(a) for a in range(4)]
    pre+=[V("v_mul_u32_u24 v7, 9216, v7"),V("v_lshl_add_u32 v7, v6, 4, v7"),V("s_mul_i32 s28, s18, 36864"),V(f"s_add_u32 s28, s28, {WS['VT'][0]-9*2048}"),
          V("s_lshl_b32 s24, s19, 11"),V("s_add_u32 s28, s28, s24"),V("s_add_u32 s29, s28, 18432"),
          V("s_cmp_eq_u32 s19, 13"),V(f"s_cselect_b32 s26, {WSSIZE}, s28"),V(f"s_cselect_b32 s27, {WSSIZE}, s29"),(4,lambda: e.wait(ds=tr[0]))]
    def epi_v(j):
        T=TMP+8*(j&1); s0,s1=(28,29) if j<2 else (26,27)
        sp=scale_pack(j,lambda r:f"v{RS+r}")
        return sp[:12]+[(8,lambda: e.vm(f"buffer_store_dwordx4 v[{T}:{T+3}], v7, s[8:11], s{s0} offen offset:{512*j} sc1"))]+sp[12:]+[(8,lambda: e.vm(f"buffer_store_dwordx4 v[{T+4}:{T+7}], v7, s[8:11], s{s1} offen offset:{512*j} sc1"))]
    mainloop(True,pre,epi_v)
    e.nop(12)
    for c_,f in epi_v(3): f()
    e(f"s_branch {N}_end")
    side_entry(e,N,f"{N}_side",224,[(144-NG0,NG0),(32-(144-NG0),144)] if NG0<=144 else [])
    e.label(f"{N}_end")
    mod.add(N,e,vg=152,ag=144,sg=64)
    return (N,224,256,147456+512)
```

```python
from fw import *
from lay import *
from k1 import prologue_common
import os
NEG=0xFE800000
def k2(mod):
    e=E(); N='attn_kernel'
    prologue_common(e,N,256,False,'op_kernel',148)
    KF=16; KX=52; Q=70; QX=74; SB=[76,92,108]; NM=124; PM=140; O=148; P=[164,172]; VF=180; FAR=196; DIA=212
    XOFF=24576; VOFF=28672
    PRI=int(os.environ.get('K2PRI','1'))
    if PRI: e("s_setprio 3")
    e("s_and_b32 s18, s17, 15"); e("s_lshr_b32 s17, s17, 4"); e("s_lshl_b32 s19, s16, 1"); e("s_add_u32 s19, s19, s17")
    e("s_lshr_b32 s21, s20, 2"); e("s_and_b32 s22, s20, 3")
    e("s_lshl_b32 s23, s19, 1"); e("s_add_u32 s23, s23, s21")
    e("s_lshl_b32 s24, s18, 2"); e("s_lshl_b32 s26, s23, 6"); e("s_add_u32 s26, s26, s24")
    e("s_mul_i32 s27, s22, 3"); e("s_add_u32 s28, s26, s27"); e("s_lshl_b32 s28, s28, 10"); e(f"s_add_u32 s28, s28, {WS['KM'][0]-8192}")
    e("s_mul_i32 s29, s21, 12"); e("s_add_u32 s37, s29, s22"); e("s_add_u32 s29, s29, s27"); e("s_lshl_b32 m0, s29, 10")
    e("s_add_u32 s30, s26, s22"); e("s_lshl_b32 s31, s30, 10"); e(f"s_add_u32 s31, s31, {WS['QM'][0]}")
    e("v_and_b32 v4, 31, v1"); e("v_lshrrev_b32 v5, 5, v1")
    e.stamp(5); e.lgkm0(); e.stamp(6)
    srd_ptr(e,8,4,WSSIZE)
    for i in range(3): e.vm(f"buffer_load_dwordx4 v3, s[8:11], s28 offen offset:{1024*i} lds")
    e.vm(f"buffer_load_dwordx4 v[{Q}:{Q+3}], v3, s[8:11], s31 offen")
    e("s_and_b32 s38, s22, 1"); e("s_lshl_b32 s38, s38, 10"); e("s_lshl_b32 s39, s26, 7"); e("s_add_u32 s39, s39, s38"); e(f"s_add_u32 s39, s39, {WS['KX'][0]-1024}")
    e("s_lshl_b32 s28, s21, 11"); e("s_add_u32 s28, s28, s38"); e(f"s_add_u32 m0, s28, {XOFF}")
    e("v_lshlrev_b32 v6, 2, v4"); e("v_lshl_or_b32 v7, v5, 31, v6"); e("s_lshl_b32 s30, s30, 7"); e(f"s_add_u32 s30, s30, {WS['QX'][0]}")
    e.vm("buffer_load_dwordx4 v3, s[8:11], s39 offen lds")
    tK=e.vm(f"buffer_load_dword v{QX}, v7, s[8:11], s30 offen")
    e.stamp(0)
    e("s_add_u32 s25, s24, s22")
    vq=[]
    def S(s): vq.append(lambda: e(s))
    off,sz=WS['VT']
    for s_ in [f"s_add_u32 s12, s4, {off}","s_addc_u32 s13, s5, 0",f"s_mov_b32 s14, {sz}","s_mov_b32 s15, 0x20000",
               "s_lshl_b32 s34, s18, 4","s_mul_i32 s35, s20, 6","s_add_u32 s34, s34, s35","s_sub_u32 s34, s34, 32","s_mul_i32 s33, s34, 9216","s_mul_i32 s36, s19, 576","s_add_u32 s33, s33, s36",
               "v_mul_u32_u24 v9, 288, v5","v_lshl_add_u32 v9, v4, 4, v9","v_cmp_gt_u32 vcc, 18, v4","v_add_u32 v9, s33, v9",f"v_mov_b32 v{VF}, {XB}",f"v_mov_b32 v{VF+1}, 9216",
               f"v_cndmask_b32 v9, v{VF}, v9, vcc",f"v_cndmask_b32 v{VF+1}, 0, v{VF+1}, vcc","s_lshl_b32 s35, s35, 10",f"s_add_u32 m0, s35, {VOFF}","s_nop 0"]: S(s_)
    tV=[0]
    for i in range(6):
        def f(i=i):
            tV[0]=e.vm("buffer_load_dwordx4 v9, s[12:15], 0 offen lds")
            if i<5: e("s_add_u32 m0, m0, 1024"); e(f"v_add_u32 v9, v9, v{VF+1}")
        vq.append(f)
    e("v_sub_u32 v8, 1, v5"); e(f"v_mul_u32_u24 v{QX+1}, 0x3f80, v8")
    e("s_cmp_lt_u32 s18, 2"); e(f"s_cbranch_scc1 {N}_b1")
    for t in range(9): e(f"v_mov_b32 v{KX+2*t+1}, 0")
    e(f"s_branch {N}_b2")
    e.label(f"{N}_b1")
    for t in range(9):
        e(f"s_cmp_lt_u32 s25, {8-t}"); e("s_cselect_b32 s36, 0xfe80, 0"); e(f"v_mov_b32 v{KX+2*t+1}, s36")
    e.label(f"{N}_b2")
    mk=["v_lshlrev_b32 v8, v4, 2","v_add_u32 v8, -1, v8","v_lshlrev_b32 v10, 2, v5","v_lshrrev_b32 v8, v10, v8","s_mov_b32 s36, 0xffff"]
    mk+=[f"v_bfe_i32 v{FAR+r}, v8, {8*(r>>2)+(r&3)}, 1" for r in range(16)]
    mk+=[f"v_bfi_b32 v{PM+p}, s36, v{FAR+2*p}, v{FAR+2*p+1}" for p in range(8)]
    mk+=["v_lshlrev_b32 v13, 4, v4","v_lshl_add_u32 v13, v5, 10, v13","s_lshl_b32 s29, s22, 12","s_lshl_b32 s38, s21, 9","s_add_u32 s29, s29, s38",f"s_add_u32 s29, s29, {VOFF}","v_add_u32 v13, s29, v13"]
    if PRI: e("s_setprio 0")
    for o in mk: e(o)
    e("s_lshl_b32 s37, s37, 10"); e("v_add_u32 v12, s37, v3")
    e("s_lshl_b32 s37, s21, 11"); e("s_lshl_b32 s38, s22, 7"); e("s_add_u32 s37, s37, s38"); e(f"s_add_u32 s37, s37, {XOFF}"); e("v_add_u32 v11, s37, v6")
    NPRE=int(os.environ.get('K2NPRE','28'))
    for _ in range(NPRE): vq.pop(0)()
    for r in range(16): e(f"v_mov_b32 v{NM+r}, 0")
    e.stamp(7); e.wait(vm=tK); e.stamp(8)
    e(f"v_dot2_f32_bf16 v10, v{QX}, v{QX}, 0")
    for r in range(4): e(f"v_dot2_f32_bf16 v10, v{Q+r}, v{Q+r}, v10")
    e(f"s_mov_b32 s39, {fl(float(os.environ.get('K2THR','3600')))}"); e.nop(2)
    e("v_mov_b32 v14, v10"); e.nop(2); e("v_permlane32_swap_b32 v14, v10"); e("v_add_f32 v10, v10, v14")
    e("s_barrier"); e.stamp(1)
    kt={}
    def krd(t):
        e.ds(f"ds_read_b128 v[{KF+4*t}:{KF+4*t+3}], v12 offset:{1024*t}"); kt[t]=e.ds(f"ds_read_b32 v{KX+2*t}, v11 offset:{128*t}")
    def smf(t,d,c):
        e.wait(ds=kt[t])
        return [f"v_mfma_f32_32x32x16_bf16 v[{d}:{d+15}], v[{KF+4*t}:{KF+4*t+3}], v[{Q}:{Q+3}], {c}",
                f"v_mfma_f32_32x32x8_bf16 v[{d}:{d+15}], v[{KX+2*t}:{KX+2*t+1}], v[{QX}:{QX+1}], v[{d}:{d+15}]"]
    def mx(i):
        d=SB[i%3]
        return [f"v_max3_f32 v{14+(p&1)}, v{14+(p&1)}, v{d+2*p}, v{d+2*p+1}" for p in range(8)]
    for t in range(7):
        krd(t)
        if vq: vq.pop(0)()
    assert not vq
    T=SB[1]
    for t in range(9):
        e.wait(ds=kt[t])
        e(f"v_dot2_f32_bf16 v{T+t}, v{KX+2*t}, v{KX+2*t}, 0")
        if t+7<9: krd(t+7)
        for r in range(4): e(f"v_dot2_f32_bf16 v{T+t}, v{KF+4*t+r}, v{KF+4*t+r}, v{T+t}")
    e.nop(3)
    e(f"v_max3_f32 v{T}, v{T}, v{T+1}, v{T+2}"); e(f"v_max3_f32 v{T+3}, v{T+3}, v{T+4}, v{T+5}"); e(f"v_max3_f32 v{T+6}, v{T+6}, v{T+7}, v{T+8}")
    e(f"v_max3_f32 v{T}, v{T}, v{T+3}, v{T+6}")
    for sh in (1,2,4,8):
        e.nop(2); e(f"v_max_f32_dpp v{T}, v{T}, v{T} row_ror:{sh} row_mask:0xf bank_mask:0xf")
    e(f"v_mov_b32 v{T+1}, v{T}"); e.nop(2); e(f"v_permlane16_swap_b32 v{T+1}, v{T}"); e(f"v_max_f32 v{T}, v{T}, v{T+1}")
    e(f"v_mov_b32 v{T+1}, v{T}"); e.nop(2); e(f"v_permlane32_swap_b32 v{T+1}, v{T}"); e(f"v_add_f32 v{T}, v{T}, v{T+1}")
    e(f"v_mul_f32 v{T}, v{T}, v10"); e(f"v_cmp_nge_f32 vcc, s39, v{T}")
    e.nop(2); e(f"s_cbranch_vccz {N}_p2")
    e("v_not_b32 v9, v8")
    for r in range(16): e(f"v_bfe_i32 v{DIA+r}, v9, {8*(r>>2)+(r&3)}, 1")
    e(f"v_mov_b32 v14, {NEG}"); e(f"v_mov_b32 v15, {NEG}")
    for t in range(9):
        d=SB[t%3]; c=f"v[{FAR}:{FAR+15}]" if t==0 else (f"v[{DIA}:{DIA+15}]" if t==8 else "0")
        for s_ in smf(t,d,c): e(s_)
        if t==2: e.nop(8)
        if t>=2:
            for o in mx(t-2): e(o)
    e.nop(2)
    for o in mx(7): e(o)
    e.nop(2)
    for o in mx(8): e(o)
    e("v_max_f32 v14, v14, v15"); e("v_mov_b32 v15, v14"); e.nop(2)
    e("v_permlane32_swap_b32 v15, v14"); e("v_max_f32 v14, v14, v15")
    for r in range(16): e(f"v_mul_f32 v{NM+r}, -1.0, v14")
    e.label(f"{N}_p2")
    e.stamp(2)
    e.wait(vm=tV[0]); e("s_barrier")
    e.stamp(3)
    vt={}
    def vrd(t,s_):
        b=VF+4*((2*t+s_)%4); vt[t,s_]=e.ds(f"ds_read_b128 v[{b}:{b+3}], v13 offset:{(2*t+s_)*2048}")
    def pv(t,s_):
        b=VF+4*((2*t+s_)%4); p=P[t%2]+4*s_
        e.wait(ds=vt[t,1])
        e(f"v_mfma_f32_32x32x16_bf16 v[{O}:{O+15}], v[{b}:{b+3}], v[{p}:{p+3}], {'0' if (t,s_)==(0,0) else f'v[{O}:{O+15}]'}")
    def valu(t):
        d=SB[t%2]; p=P[t%2]; ops=[]
        for g in range(4):
            ops+=[f"v_exp_f32 v{d+4*g+b}, v{d+4*g+b}" for b in range(4)]
            ops+=[f"v_cvt_pk_bf16_f32 v{p+2*g+b}, v{d+4*g+2*b}, v{d+4*g+2*b+1}" for b in range(2)]
            if t==0: ops+=[f"v_bfi_b32 v{p+2*g+b}, v{PM+2*g+b}, 0, v{p+2*g+b}" for b in range(2)]
            if t==8: ops+=[f"v_and_b32 v{p+2*g+b}, v{PM+2*g+b}, v{p+2*g+b}" for b in range(2)]
        return ops
    vrd(0,0); vrd(0,1)
    for it in range(11):
        ms=[]
        if it<9:
            a,b=smf(it,SB[it%2],f"v[{NM}:{NM+15}]"); ms+=[lambda a=a:e(a), lambda b=b:e(b)]
        if it>=2: ms+=[lambda t=it-2:pv(t,0), lambda t=it-2:pv(t,1)]
        v=valu(it-1) if 1<=it<=9 else []
        if it==1: e.nop(11)
        if it==10: e.nop(2)
        n=len(ms); per=-(-len(v)//n)
        for k,m in enumerate(ms):
            m()
            for o in v[k*per:(k+1)*per]: e(o)
        if 1<=it<=8: vrd(it,0); vrd(it,1)
    e.stamp(4)
    e("s_mul_i32 s28, s25, 36864"); e(f"s_add_u32 s28, s28, {WS['O'][0]}"); e("s_lshl_b32 s29, s23, 10"); e("s_add_u32 s29, s29, s28")
    e("s_lshr_b32 s30, s23, 3"); e("s_lshl_b32 s30, s30, 10"); e("s_add_u32 s28, s28, s30"); e("s_bfe_u32 s30, s23, 0x10002"); e("s_lshl_b32 s30, s30, 9")
    e("s_add_u32 s28, s28, s30"); e("s_and_b32 s30, s23, 3"); e("s_lshl_b32 s30, s30, 2"); e("s_add_u32 s28, s28, s30"); e("s_add_u32 s28, s28, 32768")
    e("v_lshlrev_b32 v7, 4, v4"); e("v_lshl_or_b32 v7, v5, 31, v7")
    e(f"v_rcp_f32 v8, v{O+10}"); e.nop(1)
    for r in range(10): e(f"v_mul_f32 v{O+r}, v{O+r}, v8")
    for r in range(5): e(f"v_cvt_pk_bf16_f32 v{P[0]+r}, v{O+2*r}, v{O+2*r+1}")
    e(f"buffer_store_dwordx4 v[{P[0]}:{P[0]+3}], v3, s[8:11], s29 offen sc1")
    if not int(os.environ.get('K2NOX','0')): e(f"buffer_store_dword v{P[0]+4}, v7, s[8:11], s28 offen"+os.environ.get('K2XF',' sc1'))
    e.label(f"{N}_end")
    mod.add(N,e,vg=228,sg=64)
    return (N,256,512,VOFF+49152)
```

```python
from fw import *
from lay import *
from k1 import prologue_common
import os
from k0 import side_entry, NG0
def k3(mod,N,XI,XO):
    e=E()
    prologue_common(e,N,192,True,'ffnb_kernel' if int(os.environ.get('MERGE','1')) else 'gu_kernel',72)
    ACC=16; RES=32; FR=40
    SLOT=30720; NS=4; PRE=2
    e("s_lshl_b32 s18, s16, 2"); e("s_and_b32 s19, s17, 3"); e("s_add_u32 s18, s18, s19"); e("s_lshr_b32 s19, s17, 2")
    e("s_mul_i32 s21, s18, 73728"); e("s_lshl_b32 s22, s20, 10"); e("s_add_u32 s21, s21, s22"); e(f"s_add_u32 s21, s21, {WS['O'][0]}")
    e("s_mul_i32 s23, s19, 110592"); e("s_mul_i32 s22, s20, 3072"); e("s_add_u32 s23, s23, s22"); e(f"s_add_u32 s23, s23, {WS['WO'][0]}")
    e("s_mul_i32 s24, s20, 5120")
    e("s_and_b32 s25, s20, 1"); e("s_lshr_b32 s26, s20, 1")
    e("s_lshl_b32 s27, s18, 1"); e("s_add_u32 s27, s27, s25")
    e("s_mul_i32 s28, s19, 3"); e("s_add_u32 s28, s28, s26")
    e("s_mul_i32 s29, s27, 36864"); e("s_lshl_b32 s30, s28, 11"); e("s_add_u32 s29, s29, s30")
    e(f"s_add_u32 s30, s29, {WS[XI][0]}")
    e.lgkm0()
    srd_ptr(e,8,4,WSSIZE)
    tok={}
    def issue_ops(c):
        b=(c%NS)*SLOT
        def f0():
            e(f"s_add_u32 m0, s24, {b}"); e("s_add_u32 s31, s21, 36864"); e.vm("buffer_load_dwordx4 v3, s[8:11], s21 offen lds")
        def f1():
            e(f"s_add_u32 m0, s24, {b+1024}"); e("s_add_u32 s21, s21, 6144"); e.vm("buffer_load_dwordx4 v3, s[8:11], s31 offen lds")
        def f2():
            e(f"s_add_u32 m0, s24, {b+2048}"); e.nop(1); e.vm("buffer_load_dwordx4 v3, s[8:11], s23 offen lds")
        def f3(): e.vm("buffer_load_dwordx4 v3, s[8:11], s23 offen offset:1024 lds")
        def f4(): tok[c]=e.vm("buffer_load_dwordx4 v3, s[8:11], s23 offen offset:2048 lds"); e("s_add_u32 s23, s23, 18432")
        return [f0,f1,f2,f3,f4]
    for c in range(PRE):
        for f in issue_ops(c): f()
    e.vm(f"buffer_load_dwordx4 v[{RES}:{RES+3}], v3, s[8:11], s30 offen"); tR=e.vm(f"buffer_load_dwordx4 v[{RES+4}:{RES+7}], v3, s[8:11], s30 offen offset:1024")
    e("s_lshl_b32 s31, s25, 10"); e("v_add_u32 v4, s31, v3"); e("v_add_u32 v5, 0x10000, v4")
    e("s_lshl_b32 s31, s26, 10"); e("s_add_u32 s31, s31, 2048"); e("v_add_u32 v6, s31, v3"); e("v_add_u32 v7, 0x10000, v6")
    def rd(ks):
        c,l=divmod(ks,6); a=(c%NS)*SLOT+l*5120; b=FR+8*(ks%4); h=1 if a>=0x10000 else 0
        e.ds(f"ds_read_b128 v[{b}:{b+3}], v{4+h} offset:{a&0xffff}")
        return e.ds(f"ds_read_b128 v[{b+4}:{b+7}], v{6+h} offset:{a&0xffff}")
    e.stamp(0); e.wait(vm=tok[0]); e("s_barrier"); e.stamp(1)
    LA=3; rt={}
    for ks in range(LA): rt[ks]=rd(ks)
    q=issue_ops(PRE)
    for ks in range(36):
        n=ks+LA
        if n<36 and n%6==0:
            c=n//6
            while q: q.pop(0)()
            e.wait(vm=tok[c]); e("s_barrier")
            if c+PRE<6: q=issue_ops(c+PRE)
        e.wait(ds=rt[ks]); b=FR+8*(ks%4); d=f"v[{ACC}:{ACC+15}]"
        e(f"v_mfma_f32_32x32x16_bf16 {d}, v[{b+4}:{b+7}], v[{b}:{b+3}], {d if ks else 0}")
        if n<36: rt[n]=rd(n)
        if q: q.pop(0)()
        if q and ks<3: q.pop(0)()
    e.stamp(2)
    e(f"s_add_u32 s30, s29, {WS[XO][0]}")
    e("s_lshl_b32 s31, s28, 14"); e("s_lshl_b32 s33, s27, 8"); e("s_add_u32 s31, s31, s33"); e(f"s_add_u32 s31, s31, {WS['ST'][0]}")
    e("s_mov_b32 s34, 0x00003f80"); e("s_mov_b32 s35, 0x3f800000"); e("s_mov_b32 s36, 0x3f803f80")
    e("v_and_b32 v8, 31, v1"); e("v_lshlrev_b32 v8, 3, v8"); e("v_lshrrev_b32 v9, 5, v1"); e("v_lshl_or_b32 v8, v9, 31, v8")
    e("v_mov_b32 v10, 0"); e("v_mov_b32 v11, 0")
    e.wait(vm=tR)
    for r in range(8):
        e(f"v_dot2_f32_bf16 v{ACC+2*r}, v{RES+r}, s34, v{ACC+2*r}"); e(f"v_dot2_f32_bf16 v{ACC+2*r+1}, v{RES+r}, s35, v{ACC+2*r+1}")
    e.nop(1)
    for r in range(8): e(f"v_cvt_pk_bf16_f32 v{FR+r}, v{ACC+2*r}, v{ACC+2*r+1}")
    e(f"buffer_store_dwordx4 v[{FR}:{FR+3}], v3, s[8:11], s30 offen sc1"); e(f"buffer_store_dwordx4 v[{FR+4}:{FR+7}], v3, s[8:11], s30 offen offset:1024 sc1")
    for r in range(8):
        e(f"v_dot2c_f32_bf16 v10, s36, v{FR+r}"); e(f"v_dot2c_f32_bf16 v11, v{FR+r}, v{FR+r}")
    e.nop(3)
    e("v_mov_b32 v12, v10"); e("v_mov_b32 v13, v11"); e.nop(2)
    e("v_permlane32_swap_b32 v12, v10"); e("v_permlane32_swap_b32 v13, v11")
    e("v_add_f32 v10, v10, v12"); e("v_add_f32 v11, v11, v13")
    e("buffer_store_dwordx2 v[10:11], v8, s[8:11], s31 offen sc1")
    e(f"s_branch {N}_end")
    d0=144+32-(144-NG0)
    side_entry(e,N,f"{N}_side",192,[(216-d0,d0)] if NG0<=144 else [])
    e.label(f"{N}_end")
    mod.add(N,e,vg=120,sg=64)
    return (N,192,384,NS*SLOT)
```

```python
from fw import *
from lay import *
from k1 import prologue_common
import os, math
C1=-2*math.sqrt(2/math.pi)*math.log2(math.e); C2=C1*0.044715
P1=4
def env(n,d): return int(os.environ.get(n,d))
def k4(mod,N,XI):
    e=E()
    prologue_common(e,N,256)
    XV=12; ACC=44; NSET=5; WF=204; NWF=5; TMP=224; OUT=232; CON=240; EXT=248
    LA=env('K4LA',4); RING=144; BUD=env('K4BUD',20); LEAD=env('K4LEAD',34); LDC=env('K4LDC',8); SCH=env('K4SCH',36); PRO=env('K4PRO',18)
    LEAD2=env('K4LEAD2',72); SPR=env('K4SPR',0)
    e("s_and_b32 s18, s16, 1"); e("s_lshl_b32 s18, s18, 2"); e("s_and_b32 s19, s17, 3"); e("s_add_u32 s18, s18, s19")
    e("s_lshr_b32 s19, s16, 1"); e("s_lshl_b32 s19, s19, 3"); e("s_lshr_b32 s17, s17, 2"); e("s_add_u32 s19, s19, s17")
    e("s_lshl_b32 s18, s18, 3"); e("s_lshl_b32 s21, s20, 1"); e("s_add_u32 s18, s18, s21")
    e("s_mul_i32 s21, s18, 36864"); e(f"s_add_u32 s21, s21, {WS[XI][0]}"); e("s_add_u32 s22, s21, 36864")
    e(f"s_mul_i32 s23, s19, {324*1024}"); e(f"s_add_u32 s23, s23, {WS['WGU'][0]}")
    e("s_lshl_b32 s30, s20, 10"); e("s_lshl_b32 s31, s20, 11"); e("s_lshl_b32 s32, s20, 12"); e(f"s_mul_i32 s33, s20, {SCH//4*1024}")
    e.lgkm0()
    srd_ptr(e,8,4,WSSIZE)
    def xreg(ks,t):
        f=2*ks+t
        return f"a[{4*f}:{4*f+3}]" if f<64 else f"v[{XV+4*(f-64)}:{XV+4*(f-64)+3}]"
    NP1=36*P1
    sizes=[4,4,8]+[16]*8+[SCH]*((324-NP1)//SCH); start=[sum(sizes[:i]) for i in range(len(sizes)+1)]; assert start[-1]==324
    tokW={}; tokX={}; stt={}; items=[]
    for c,sz in enumerate(sizes):
        per=sz//4; sr={1:30,2:31,4:32,SCH//4:33}[per]
        need=start[c+1]-RING; cb=0
        while need>0 and start[max(cb-1,0)]<need: cb+=1
        for i in range(per):
            def f(c=c,i=i,sr=sr):
                if i%4==0:
                    e(f"s_add_u32 m0, s{sr}, {((start[c]%RING)+i)*1024}"); e(f"s_add_u32 s24, s{sr}, {(start[c]+i)*1024}"); e("s_add_u32 s24, s24, s23")
                tokW[c]=e.vm(f"buffer_load_dwordx4 v3, s[8:11], s24 offen offset:{1024*(i%4)} lds")
            items.append((start[c]-LA-1-(per-1-i)*4*SPR+i*0.01,cb,f))
    for ks in range(36):
        for t in range(2):
            def f(ks=ks,t=t):
                tokX[ks]=e.vm(f"buffer_load_dwordx4 {xreg(ks,t)}, v3, s[8:11], s{21+t} offen offset:{1024*(ks%4)}")
                if ks%4==3: e(f"s_add_u32 s{21+t}, s{21+t}, 4096")
            items.append((P1*ks+t*0.01,0,f))
    def sreg(i,t):
        k=2*i+t
        return ACC+32*P1+2*k if k<16 else EXT+2*(k-16)
    STN=env('K4STN',122)
    for i in range(9):
        for t in range(2):
            def f(i=i,t=t):
                r=sreg(i,t); stt[t]=e.vm(f"buffer_load_dwordx2 v[{r}:{r+1}], v5, s[8:11], s25 offen offset:{256*t}")
                if t==1: e("s_add_u32 s25, s25, 16384")
            items.append((STN-(9-i)*5+t*0.01,0,f))
    def sent(i):
        def f():
            if i==0:
                for r in range(4): e(f"v_mov_b32 v{EXT+r}, -1")
                e("s_mul_i32 s34, s2, 28672"); e("s_mul_i32 s35, s20, 7168"); e("s_add_u32 s34, s34, s35"); e(f"s_add_u32 s34, s34, {WS['P'][0]}")
            if i==4: e("s_add_u32 s34, s34, 4096")
            e.vm(f"buffer_store_dwordx4 v[{EXT}:{EXT+3}], v3, s[8:11], s34 offen offset:{1024*(i%4)} sc1")
        return f
    for i in range(7): items.append((230+3*i,0,sent(i)))
    items.sort(key=lambda x:x[0])
    e("v_and_b32 v6, 31, v1"); e("v_lshrrev_b32 v7, 5, v1")
    while items and items[0][0]<PRO: items.pop(0)[2]()
    e("v_add_u32 v4, 0x10000, v3"); e("v_add_u32 v9, 0x20000, v3")
    e("v_mul_u32_u24 v5, 147456, v7"); e("v_lshl_add_u32 v5, v6, 3, v5")
    e("s_lshl_b32 s25, s18, 8"); e(f"s_add_u32 s25, s25, {WS['ST'][0]}")
    e("v_lshrrev_b32 v8, 4, v6"); e("v_mul_u32_u24 v8, 147456, v8"); e("v_and_b32 v6, 15, v6"); e("v_lshl_add_u32 v8, v6, 4, v8"); e("v_lshl_add_u32 v8, v7, 8, v8")
    e("s_mul_i32 s26, s18, 294912"); e("s_mul_i32 s27, s19, 4608"); e("s_add_u32 s26, s26, s27"); e(f"s_add_u32 s26, s26, {WS['H'][0]}"); e("s_add_u32 s27, s26, 294912")
    e("s_add_u32 s28, s26, 4096"); e("s_add_u32 s29, s27, 4096")
    def V(s,c=4): return (c,lambda: e(s))
    def stats_ops():
        ops=[]
        for t in range(2):
            a=sreg(0,t); c1,c2,vv=CON+3*t,CON+3*t+1,CON+3*t+2
            ops.append((4,lambda t=t: e.wait(vm=stt[t])))
            for i in range(1,9):
                ops+=[V(f"v_add_f32 v{a}, v{a}, v{sreg(i,t)}"),V(f"v_add_f32 v{a+1}, v{a+1}, v{sreg(i,t)+1}")]
            ops+=[V(f"v_mov_b32 v{TMP}, v{a}"),V(f"v_mov_b32 v{TMP+1}, v{a+1}"),V("s_nop 1",8)]
            ops+=[V(f"v_permlane32_swap_b32 v{TMP}, v{a}"),V(f"v_permlane32_swap_b32 v{TMP+1}, v{a+1}")]
            ops+=[V(f"v_add_f32 v{a}, v{a}, v{TMP}"),V(f"v_add_f32 v{a+1}, v{a+1}, v{TMP+1}")]
            ops+=[V(f"v_mul_f32 v{a}, {fl(1.0/D)}, v{a}"),V(f"v_mul_f32 v{a+1}, {fl(1.0/D)}, v{a+1}"),V(f"v_fma_f32 v{a+1}, -v{a}, v{a}, v{a+1}")]
            ops+=[V(f"v_max_f32 v{a+1}, 0, v{a+1}"),V(f"v_add_f32 v{vv}, {fl(1e-5)}, v{a+1}"),V(f"v_rsq_f32 v{a}, v{vv}",8),V("s_nop 0")]
            ops+=[V(f"v_mul_f32 v{c1}, {fl(C1)}, v{a}"),V(f"v_mul_f32 v{a+1}, v{a}, v{a}"),V(f"v_mul_f32 v{a+1}, v{a+1}, v{a}"),V(f"v_mul_f32 v{c2}, {fl(C2)}, v{a+1}")]
        return ops
    ecount=[0]
    def epi_ops(fs,ts=(0,1)):
        ops=[]
        for t in ts:
            A=ACC+32*(fs%NSET)+16*t; c1,c2,vv=CON+3*t,CON+3*t+1,CON+3*t+2
            O=OUT+4*(ecount[0]%2); ecount[0]+=1
            for hf in range(2):
                T=TMP+4*hf; g=A+4*hf; u=A+8+4*hf
                ops+=[V(f"v_mul_f32 v{T+i}, v{g+i}, v{g+i}") for i in range(4)]
                ops+=[V(f"v_fma_f32 v{T+i}, v{T+i}, v{c2}, v{c1}") for i in range(4)]
                ops+=[V(f"v_mul_f32 v{T+i}, v{T+i}, v{g+i}") for i in range(4)]
                for i in range(4): ops+=[V(f"v_exp_f32 v{T+i}, v{T+i}",8),V(f"v_mul_f32 v{u+i}, v{u+i}, v{g+i}")]
                ops+=[V(f"v_fma_f32 v{T+i}, v{T+i}, v{vv}, v{vv}") for i in range(4)]
                ops+=[V(f"v_rcp_f32 v{T+i}, v{T+i}",8) for i in range(4)]
                ops+=[V(f"v_mul_f32 v{u+i}, v{u+i}, v{T+i}") for i in range(4)]
                ops+=[V(f"v_cvt_pk_bf16_f32 v{O+2*hf+i}, v{u+2*i}, v{u+2*i+1}") for i in range(2)]
            so,off=(26+t,512*fs) if fs<8 else (28+t,0)
            ops.append((4,lambda O=O,so=so,off=off: e.vm(f"buffer_store_dwordx4 v[{O}:{O+3}], v8, s[8:11], s{so} offen offset:{off} sc1")))
        return ops
    seq=[(P1*ks+fs,ks,fs,(0,1)) for ks in range(36) for fs in range(P1)]+[(36*fs+ks,ks,fs,(0,1)) for fs in range(P1,8) for ks in range(36)]
    SPLIT=env('K4SPLIT',1)
    if SPLIT:
        seq+=[(288+ks,ks,8,(0,)) for ks in range(36)]+[(288+ks,ks,8,(1,)) for ks in range(36)]
    else: seq+=[(288+ks,ks,8,(0,1)) for ks in range(36)]
    rt={}
    def rd(n):
        a=(seq[n][0]%RING)*1024; b=WF+4*(n%NWF)
        rt[n]=e.ds(f"ds_read_b128 v[{b}:{b+3}], v{[3,4,9][a>>16]} offset:{a&0xffff}")
    e.stamp(0); e.wait(vm=tokW[0]); e("s_barrier"); e.stamp(1)
    cbar=0; fq=[]
    def can(it): return it[1]<=cbar
    def bar(c,n):
        nonlocal cbar
        while any(it[0]<=start[c]-LA for it in items): assert can(items[0]); items.pop(0)[2]()
        e.wait(vm=tokW[c]); e("s_barrier"); cbar=c
    for n in range(LA): rd(n)
    NS_=len(seq); gap=0
    for n,(pos,ks,fs,ts) in enumerate(seq):
        m=n+LA; used=0
        if m<324 and m in start:
            c=start.index(m); bar(c,n); used+=8
            st={5:2,8:3,11:4,12:5,13:6,15:7}.get(c) if SCH==36 else None
            if st: e.stamp(st)
        if n<NP1 and fs==0:
            while any(it[0]<=P1*ks+0.5 for it in items): assert can(items[0]); items.pop(0)[2]()
        if n==STN: fq.extend((None,o) for o in stats_ops())
        if n==NP1: assert not fq, 'stats late'
        if n>=NP1 and ks==0 and 0 in ts: assert not any(tag==fs-NSET for tag,_ in fq), f"epilogue of {fs-NSET} late"
        if n>=NP1 and ks==4:
            if fs==P1:
                for k in range(P1): fq.extend((k,o) for o in epi_ops(k))
            elif 0 in ts: fq.extend((fs-1,o) for o in epi_ops(fs-1))
            else: fq.extend((8,o) for o in epi_ops(8,(0,)))
        b=WF+4*(n%NWF)
        for t in ts:
            first = t==ts[0]
            if first and e.wait(vm=tokX[ks] if (n<NP1 and fs==0) else None, ds=rt[n]): used+=4
            d=f"v[{ACC+32*(fs%NSET)+16*t}:{ACC+32*(fs%NSET)+16*t+15}]"
            e(f"v_mfma_f32_32x32x16_bf16 {d}, v[{b}:{b+3}], {xreg(ks,t)}, {d if ks else 0}")
            if first and m<NS_: rd(m); used+=4
            if t==1 and items and items[0][0]<n+(LEAD if n<NP1-LEAD else LEAD2) and can(items[0]): items.pop(0)[2](); used+=LDC
            while fq and used+fq[0][1][0]<=BUD: c_,f=fq.pop(0)[1]; f(); used+=c_
            used=0
    e.stamp(8)
    print("K4 leftover filler cycles:",sum(o[0] for _,o in fq),file=__import__('sys').stderr)
    for _,(c_,f) in fq: f()
    e.nop(12)
    for c_,f in epi_ops(8,(1,) if SPLIT else (0,1)): f()
    e.stamp(9)
    e.label(f"{N}_end")
    mod.add(N,e,vg=252,ag=256,sg=48)
    return (N,256,256,RING*1024)
```

```python
from fw import *
from lay import *
from k1 import prologue_common
import os
def env(n,d): return int(os.environ.get(n,d))
def k5(mod):
    eb=E(); eb("s_cmp_ge_u32 s2, 256"); eb("s_cbranch_scc1 downb_kernel_end"); eb("s_mov_b32 s49, 1"); eb("s_branch down_common"); eb.label("downb_kernel_end")
    VG=224
    mod.add('downb_kernel',eb,vg=VG,ag=256,sg=56)
    e=E(); N='downa_kernel'
    prologue_common(e,N,256)
    e.L[2:2]=["  s_mov_b32 s49, 0","down_common:"]
    ACC=24; WF=96; NWF=8; HV=128; OUT=160; RES=176; IN=188
    LA=env('K5LA',5); LEAD=env('K5LEAD',24); RING=140; LDP=env('K5LDP',1); SPR=env('K5SPR',1); PRO=env('K5PRO',16); PF=env('K5PF',30); LEAD2=env('K5LEAD2',10); LEAD3=env('K5LEAD3',100); RD=env('K5RD',300)
    e("s_lshr_b32 s18, s16, 1"); e("s_and_b32 s19, s16, 1"); e("s_lshl_b32 s19, s19, 3"); e("s_and_b32 s21, s17, 7"); e("s_add_u32 s19, s19, s21"); e("s_lshr_b32 s17, s17, 3")
    e("s_lshl_b32 s19, s19, 2"); e("s_add_u32 s19, s19, s20")
    e("s_mul_i32 s21, s19, 294912"); e("s_mul_i32 s22, s18, 36864"); e("s_add_u32 s21, s21, s22"); e(f"s_add_u32 s21, s21, {WS['H'][0]}"); e("s_add_u32 s22, s21, 147456")
    e("s_lshl_b32 s23, s17, 2"); e("s_add_u32 s23, s23, s18"); e(f"s_mul_i32 s23, s23, {324*1024}"); e(f"s_add_u32 s23, s23, {WS['WD'][0]}")
    e("s_lshl_b32 s24, s20, 10"); e("s_lshl_b32 s25, s20, 11"); e("s_mul_i32 s32, s20, 5120")
    e("s_load_dwordx2 s[6:7], s[0:1], 56")
    e.lgkm0()
    srd_ptr(e,8,4,WSSIZE)
    def hreg(ks,t):
        f=2*ks+t
        return f"a[{4*f}:{4*f+3}]" if f<64 else f"v[{HV+4*(f-64)}:{HV+4*(f-64)+3}]"
    sizes=[4,8,8]+[20]*15+[4]; start=[sum(sizes[:i]) for i in range(len(sizes)+1)]; assert start[-1]==324
    tokW={}; tokH={}; items=[]; lastd=-99
    for c,sz in enumerate(sizes):
        per=sz//4; sr={1:24,2:25,5:32}[per]
        need=start[c+1]-RING; cb=0
        while need>0 and start[max(cb-1,0)]<need: cb+=1
        for i in range(per):
            def f(c=c,i=i,sr=sr):
                if i%4==0:
                    e(f"s_add_u32 m0, s{sr}, {((start[c]%RING)+i)*1024}"); e(f"s_add_u32 s27, s{sr}, {(start[c]+i)*1024}"); e("s_add_u32 s27, s27, s23")
                tokW[c]=e.vm(f"buffer_load_dwordx4 v3, s[8:11], s27 offen offset:{1024*(i%4)} lds")
            lastd=max(lastd+0.01,start[c]-LA-1-(per-1-i)*4*SPR); items.append((lastd,cb,f))
    for ks in range(36):
        for t in range(2):
            def f(ks=ks,t=t):
                tokH[ks]=e.vm(f"buffer_load_dwordx4 {hreg(ks,t)}, v3, s[8:11], s{21+t} offen offset:{1024*(ks%4)}")
                if ks%4==3: e(f"s_add_u32 s{21+t}, s{21+t}, 4096")
            items.append((5*ks+t*0.01,0,f))
    def res(i):
        def f():
            if i<2: e.vm(f"buffer_load_dwordx4 v[{RES+4*i}:{RES+4*i+3}], v6, s[8:11], s31 offen offset:{256*i}")
            else: e.vm(f"buffer_load_dwordx2 v[{RES+8+2*(i-2)}:{RES+9+2*(i-2)}], v7, s[8:11], s30 offen offset:{256*(i-2)}")
        return f
    for i in range(4): items.append((RD+i*0.01,0,res(i)))
    items.sort(key=lambda x:x[0])
    def can(it): return it[1]<=cbar
    while items and items[0][0]<PRO: items.pop(0)[2]()
    e("v_add_u32 v4, 0x10000, v3"); e("v_add_u32 v5, 0x20000, v3")
    e("v_and_b32 v8, 15, v1"); e("v_lshrrev_b32 v9, 4, v1"); e("v_lshlrev_b32 v6, 4, v8"); e("v_lshl_add_u32 v6, v9, 9, v6")
    e("v_lshrrev_b32 v10, 5, v1"); e("v_lshlrev_b32 v7, 4, v8"); e("v_lshl_add_u32 v7, v10, 9, v7"); e("v_and_b32 v11, 1, v9"); e("v_lshl_add_u32 v7, v11, 3, v7")
    e("s_mul_i32 s28, s19, 36864"); e("s_mul_i32 s29, s17, 9216"); e("s_add_u32 s28, s28, s29")
    e(f"s_add_u32 s30, s28, {WS['X1'][0]+8192}"); e("s_lshl_b32 s29, s18, 11"); e("s_add_u32 s29, s29, s28"); e(f"s_add_u32 s31, s29, {WS['X1'][0]}")
    seq=[(ks,j) for ks in range(36) for j in (0,1,2,3,8)]+[(ks,j) for ks in range(36) for j in (4,5)]+[(ks,j) for ks in range(36) for j in (6,7)]
    NA=180; NB=252
    rt={}
    def rd(n):
        a=(n%RING)*1024; b=WF+4*(n%NWF)
        rt[n]=e.ds(f"ds_read_b128 v[{b}:{b+3}], v{3+(a>>16)} offset:{a&0xffff}")
    def V(s): return lambda: e(s)
    def VM(s): return lambda: e.vm(s)
    send=[V("s_lshr_b32 s33, s19, 2"),V("s_lshl_b32 s33, s33, 2"),V("s_add_u32 s33, s33, s17"),V("s_lshl_b32 s33, s33, 2"),V("s_add_u32 s33, s33, s20"),
          V("s_mul_i32 s34, s33, 28672"),V(f"s_add_u32 s34, s34, {WS['P'][0]}")]
    send1=send; send2=[]
    for q in range(3):
        send=send1 if q<2 else send2
        send+=[V(f"s_add_u32 s35, s18, {q+1}"),V("s_and_b32 s35, s35, 3"),V("s_mul_i32 s35, s35, 6144"),V("s_add_u32 s35, s35, s34")]
        if q==2: send+=[V("s_add_u32 s35, s35, 4096")]
        for t in range(2):
            O=OUT+8*(q&1)+4*t; a=ACC+16*q+4*t; b=a+8
            send+=[V(f"v_cvt_pk_bf16_f32 v{O}, v{a}, v{a+1}"),V(f"v_cvt_pk_bf16_f32 v{O+1}, v{a+2}, v{a+3}"),
                   V(f"v_cvt_pk_bf16_f32 v{O+2}, v{b}, v{b+1}"),V(f"v_cvt_pk_bf16_f32 v{O+3}, v{b+2}, v{b+3}"),
                   VM(f"buffer_store_dwordx4 v[{O}:{O+3}], v3, s[8:11], s35 offen offset:{1024*t+2048*(q&1)} sc1")]
    a=ACC+64; O=OUT; OWN=ACC+48; send=send1
    send+=[V("s_sub_u32 s35, s20, s18"),V("s_add_u32 s35, s35, 3"),V("s_and_b32 s35, s35, 3"),V("s_lshl_b32 s35, s35, 10"),V("s_add_u32 s35, s35, s34"),V("s_add_u32 s35, s35, 24576")]
    send+=[V(f"v_cvt_pk_bf16_f32 v{O+r}, v{a+2*r}, v{a+2*r+1}") for r in range(4)]
    send+=[VM(f"buffer_store_dwordx4 v[{O}:{O+3}], v3, s[8:11], s35 offen sc1")]
    send+=[V("s_mul_i32 s41, s18, 6144"),V("s_add_u32 s41, s41, s34"),V("s_add_u32 s42, s41, 4096"),V("s_add_u32 s43, s34, 24576"),
           V("s_cmp_eq_u32 s18, s20"),V(f"s_cselect_b32 s43, s43, {WSSIZE}")]
    recv=[f"buffer_load_dwordx4 v[{IN+4*i}:{IN+4*i+3}], v3, s[8:11], s{41+(i>>2)} offen offset:{1024*(i&3)} sc1" for i in range(6)]
    recv+=[f"buffer_load_dwordx4 v[{IN+24+4*q}:{IN+27+4*q}], v3, s[8:11], s43 offen offset:{1024*q} sc1" for q in range(3)]
    rq=[VM(s) for s in recv]
    e.stamp(0); e.wait(vm=tokW[0]); e("s_barrier"); e.stamp(1)
    cbar=0
    for n in range(min(LA,4)): rd(n)
    if LA>4:
        e.wait(vm=tokW[1]); e("s_barrier"); cbar=1
        for n in range(4,LA): rd(n)
    for n in range(324):
        ks,j=seq[n]; m=n+LA
        if m<324 and m in start and start.index(m)>cbar:
            c=start.index(m)
            while c not in tokW or any(it[0]<=start[c]-LA for it in items): assert can(items[0]); items.pop(0)[2]()
            e.wait(vm=tokW[c]); e("s_barrier"); cbar=c
            if c in(5,8): e.stamp({5:2,8:3}[c])
        first = n<NA and j==0
        if first:
            while any(it[0]<=5*ks+0.5 for it in items): assert can(items[0]); items.pop(0)[2]()
        if n==NA: e.stamp(4)
        if n==NB: e.stamp(5); assert not send; send=send2
        b=WF+4*(n%NWF)
        for t in range(2):
            if t==0: e.wait(vm=tokH[ks] if first else None, ds=rt[n])
            d=f"v[{ACC+8*j+4*t}:{ACC+8*j+4*t+3}]"
            e(f"v_mfma_f32_16x16x32_bf16 {d}, v[{b}:{b+3}], {hreg(ks,t)}, {d if ks else 0}")
            if t==0 and m<324: rd(m)
            lead = LEAD if n<NA-LEAD2 else LEAD3
            rdy = items and items[0][0]<n+lead and can(items[0])
            if t==1 and rdy: items.pop(0)[2]()
            elif (n>=NA+2 and n not in (NB,NB+1)) and send and not rdy:
                for _ in range(2 if t else 1):
                    if send: send.pop(0)()
            elif n>=NB+PF and t==1 and rq and not items: rq.pop(0)()
    assert not items and not send
    while rq: rq.pop(0)()
    e.stamp(6)
    e("s_mov_b32 s38, 0x00003f80"); e("s_mov_b32 s39, 0x3f800000")
    def acc_add(src,dst):
        for dd,(x,y) in enumerate(dst):
            e(f"v_dot2_f32_bf16 v{x}, v{src+dd}, s38, v{x}"); e(f"v_dot2_f32_bf16 v{y}, v{src+dd}, s39, v{y}")
    def dst(t): return [(OWN+4*t,OWN+4*t+1),(OWN+4*t+2,OWN+4*t+3),(OWN+8+4*t,OWN+9+4*t),(OWN+10+4*t,OWN+11+4*t)]
    d9=[(a+2*r,a+2*r+1) for r in range(4)]
    e("s_cmp_eq_u32 s49, 0"); e(f"s_cbranch_scc1 {N}_oa")
    srd_ptr(e,12,6,XB)
    e("v_mul_u32_u24 v16, 1152, v8"); e("v_lshl_add_u32 v16, v9, 4, v16")
    e("v_and_b32 v17, 31, v1"); e("v_mul_u32_u24 v17, 1152, v17"); e("v_lshl_add_u32 v17, v10, 4, v17")
    e("s_mul_i32 s52, s19, 36864"); e("s_mul_i32 s48, s17, 288"); e("s_add_u32 s52, s52, s48"); e("s_lshl_b32 s48, s18, 6"); e("s_add_u32 s50, s52, s48"); e("s_add_u32 s51, s50, 18432")
    e("s_add_u32 s52, s52, 256"); e(f"s_branch {N}_ob")
    e.label(f"{N}_oa")
    srd_ptr(e,12,4,WSSIZE)
    e("v_mov_b32 v16, v6"); e("v_mov_b32 v17, v3"); e(f"s_add_u32 s50, s29, {WS['X0'][0]}"); e("s_add_u32 s51, s50, 256"); e(f"s_add_u32 s52, s28, {WS['X0'][0]+8192}")
    e.label(f"{N}_ob")
    for r in range(4): e(f"v_mov_b32 v{20+r}, 0")
    e("s_mov_b32 s53, 0x3f803f80"); e("s_mov_b32 s47, 0")
    e("s_waitcnt vmcnt(9)")
    for t in range(2): acc_add(RES+4*t,dst(t))
    acc_add(RES+8,d9)
    e(f"s_branch {N}_chk")
    e.label(f"{N}_poll")
    for s_ in recv: e(s_)
    e.label(f"{N}_chk")
    e("s_add_u32 s47, s47, 1"); e("s_waitcnt vmcnt(0)")
    e(f"v_max3_u32 v12, v{IN}, v{IN+1}, v{IN+2}"); e(f"v_max3_u32 v13, v{IN+3}, v{IN+4}, v{IN+5}")
    for r in range(6,36,2): e(f"v_max3_u32 v{12+((r>>1)&1)}, v{12+((r>>1)&1)}, v{IN+r}, v{IN+r+1}")
    e("v_max_u32 v12, v12, v13"); e("v_cmp_eq_u32 vcc, -1, v12")
    e("s_cmp_gt_u32 s47, 0x2000"); e(f"s_cbranch_scc1 {N}_go"); e(f"s_cbranch_vccnz {N}_poll")
    e.label(f"{N}_go"); e.stamp(8)
    if PROF: e("s_add_u32 s82, s66, s47")
    for q in range(3):
        for t in range(2): acc_add(IN+8*q+4*t,dst(t))
    e.nop(1)
    for t in range(2):
        for dd,(x,y) in enumerate(dst(t)): e(f"v_cvt_pk_bf16_f32 v{O+4*t+dd}, v{x}, v{y}")
        e(f"buffer_store_dwordx4 v[{O+4*t}:{O+4*t+3}], v16, s[12:15], s{50+t} offen sc1")
    e("s_cmp_lg_u32 s18, s20"); e(f"s_cbranch_scc1 {N}_no9")
    for q in range(3): acc_add(IN+24+4*q,d9)
    e.nop(1)
    for r in range(4): e(f"v_cvt_pk_bf16_f32 v{O+8+r}, v{a+2*r}, v{a+2*r+1}")
    for r in range(4):
        e(f"v_dot2c_f32_bf16 v{20+2*(r>>1)}, s53, v{O+8+r}"); e(f"v_dot2c_f32_bf16 v{21+2*(r>>1)}, v{O+8+r}, v{O+8+r}")
    e(f"v_permlane16_swap_b32 v{O+8}, v{O+10}"); e(f"v_permlane16_swap_b32 v{O+9}, v{O+11}")
    e(f"buffer_store_dwordx4 v[{O+8}:{O+11}], v17, s[12:15], s52 offen sc1")
    e.label(f"{N}_no9")
    e("s_cmp_lg_u32 s49, 0"); e(f"s_cbranch_scc1 {N}_end")
    for r in range(8):
        e(f"v_dot2c_f32_bf16 v{20+2*(r>>2)}, s53, v{O+r}"); e(f"v_dot2c_f32_bf16 v{21+2*(r>>2)}, v{O+r}, v{O+r}")
    e("s_lshl_b32 s47, s17, 2"); e("s_add_u32 s47, s47, s18"); e("s_lshl_b32 s47, s47, 14"); e("s_lshl_b32 s48, s19, 8"); e("s_add_u32 s47, s47, s48"); e(f"s_add_u32 s47, s47, {WS['ST2'][0]}")
    e("v_permlane16_swap_b32 v20, v22"); e("v_permlane16_swap_b32 v21, v23")
    e("v_add_f32 v20, v20, v22"); e("v_add_f32 v21, v21, v23"); e("v_mov_b32 v22, v20"); e("v_mov_b32 v23, v21")
    e("v_lshlrev_b32 v11, 3, v1"); e("v_lshl_or_b32 v11, v10, 31, v11")
    e("v_permlane32_swap_b32 v22, v20"); e("v_permlane32_swap_b32 v23, v21")
    e("v_add_f32 v20, v20, v22"); e("v_add_f32 v21, v21, v23")
    e("buffer_store_dwordx2 v[20:21], v11, s[8:11], s47 offen sc1")
    e.stamp(9)
    e.label(f"{N}_end")
    mod.add(N,e,vg=VG,ag=256,sg=56)
    return (N,256,256,RING*1024),('downb_kernel',256,256,RING*1024)
```

```python
import sys
from fw import *
from lay import *
import k0
HDR=open('interleave_layers__sliding_block__glu_gated_geglu__prompt.s.ref').read().split('; Override launch')[0].rstrip()
def build():
    m=Module(); L=[]
    K0=k0.k0(m); L.append(K0)
    try:
        import k1; K1=k1.k1(m); L.append((K1[0],256)+K1[2:])
        import k2; K2=k2.k2(m); L.append(K2)
        import k3; K3a=k3.k3(m,'op_kernel','X0','X1'); L.append((K3a[0],256)+K3a[2:])
        import k4; K4a=k4.k4(m,'gu_kernel','X1'); L.append(K4a)
        import k5; K5a,K5b=k5.k5(m); L.append(K5a)
        L+=[K1,K2,K3a,K4a,K5b]
    except ModuleNotFoundError as ex:
        print("partial build:",ex,file=sys.stderr)
    for k in L: m.launch(*k)
    for er in m.errs: print(er,file=sys.stderr)
    print(len(m.errs),"hazard errors",file=sys.stderr)
    return m.text(HDR)
if __name__=='__main__':
    t=build(); open(sys.argv[1] if len(sys.argv)>1 else 'k.s','w').write(t)
```

```python
import re
TRANS=('v_exp_f32','v_log_f32','v_rcp_f32','v_rsq_f32','v_sqrt_f32','v_sin_f32','v_cos_f32')
def regs(op):
    op=op.strip()
    if op.startswith('-'): op=op[1:]
    m=re.fullmatch(r'abs\((.*)\)',op)
    if m: op=m.group(1)
    m=re.fullmatch(r'\|(.*)\|',op)
    if m: op=m.group(1)
    m=re.fullmatch(r'([vas])(\d+)',op)
    if m: return [op]
    m=re.fullmatch(r'([vas])\[(\d+):(\d+)\]',op)
    if m: return [f"{m.group(1)}{i}" for i in range(int(m.group(2)),int(m.group(3))+1)]
    if op in('vcc','exec','m0','scc'): return [op]
    if op in('vcc_lo','vcc_hi'): return ['vcc']
    if op in('exec_lo','exec_hi'): return ['exec']
    return []
class Ins:
    def __init__(s,text):
        s.text=text; t=text.split(';')[0].strip()
        parts=t.split(None,1); s.op=parts[0]; rest=parts[1] if len(parts)>1 else ''
        ops=[o.strip() for o in re.split(r',(?![^\[]*\])',rest)] if rest else []
        if ops:
            last=ops[-1].split(); s.mods=' '.join(last[1:]); ops[-1]=last[0] if last else ''
        else: s.mods=''
        s.ops=ops; op=s.op
        for suf in('_e32','_e64','_dpp','_sdwa'):
            if op.endswith(suf): op=op[:-len(suf)]
        s.base=op
        s.dpp=s.op.endswith('_dpp')
        s.mfma=op.startswith('v_mfma'); s.valu=op.startswith('v_') and not s.mfma
        s.trans=op in TRANS; s.ds=op.startswith('ds_'); s.vmem=op.startswith(('buffer_','global_','flat_'))
        s.salu=op.startswith('s_'); s.W=[]; s.R=[]; s.states=1
        s.ldsdma = s.vmem and (' lds' in ' '+s.mods or 'load_lds' in op)
        if op=='s_nop': s.states=int(ops[0],0)+1
        if s.mfma:
            s.D=regs(ops[0]); s.A=regs(ops[1]); s.B=regs(ops[2]); s.C=regs(ops[3]); s.W=s.D; s.R=s.A+s.B+s.C
            s.passes = 8 if '32x32' in op else 4
        elif s.valu:
            if op.startswith('v_cmp'): s.W=regs(ops[0]); s.R=sum((regs(o) for o in ops[1:]),[])
            elif 'permlane' in op and 'swap' in op: s.W=regs(ops[0])+regs(ops[1]); s.R=list(s.W)
            elif op in('v_add_co_u32','v_sub_co_u32','v_addc_co_u32','v_subb_co_u32'):
                s.W=regs(ops[0])+regs(ops[1]); s.R=sum((regs(o) for o in ops[2:]),[])
            else:
                s.W=regs(ops[0]); s.R=sum((regs(o) for o in ops[1:]),[])
                if op in('v_fmac_f32','v_dot2c_f32_bf16','v_pk_fmac_f16') or s.dpp or s.op.endswith('_sdwa'): s.R+=s.W
        elif s.ds:
            if 'read' in op or 'permute' in op or 'swizzle' in op: s.W=regs(ops[0]); s.R=sum((regs(o) for o in ops[1:]),[])
            else: s.R=sum((regs(o) for o in ops),[])
        elif s.vmem:
            if 'load' in op and not s.ldsdma: s.W=regs(ops[0]); s.R=sum((regs(o) for o in ops[1:]),[])
            else: s.R=sum((regs(o) for o in ops),[])
            if s.ldsdma: s.R+=['m0']
            s.wide = 'store' in op and ('x3' in op or 'x4' in op)
            if s.wide: s.data=regs(ops[0]) if op.startswith('buffer') else regs(ops[1])
        elif s.salu:
            if op.startswith(('s_cmp','s_cbranch','s_branch','s_waitcnt','s_barrier','s_nop','s_endpgm','s_setprio','s_sleep')): s.R=sum((regs(o) for o in ops),[])
            else:
                s.W=regs(ops[0]); s.R=sum((regs(o) for o in ops[1:]),[])
                if 'saveexec' in op: s.W+=['exec']
def check_hazards(lines,name=''):
    ins=[]
    for l in lines:
        t=l.split(';')[0].strip()
        if not t or t.endswith(':') or t.startswith('.'): continue
        ins.append(Ins(t))
    errs=[]
    for j,c in enumerate(ins):
        dist=0
        for i in range(j-1,max(-1,j-24),-1):
            p=ins[i]; need=0; why=''
            def ov(a,b): return set(a)&set(b)
            pW=[r for r in p.W];
            if p.valu:
                vw=[r for r in pW if r[0] in 'va' and r!='vcc']; sw=[r for r in pW if r[0]=='s' or r=='vcc']
                if c.mfma and ov(vw,c.R): need,why=2,'valu->mfma'
                if p.trans and c.valu and not c.trans and ov(vw,c.R): need,why=max(need,1),'trans->valu'
                if c.valu and ('permlane' in c.base or c.dpp) and ov(vw,c.R): need,why=2,'valu->permlane/dpp'
                if c.valu and c.base in('v_readfirstlane_b32','v_readlane_b32') and ov(vw,c.R): need,why=max(need,1),'valu->readlane'
                if c.valu and ov(sw,c.R): need,why=max(need,2),'valu sgpr->valu'
                if c.vmem and ov(sw,c.R): need,why=5,'valu sgpr->vmem'
                if c.salu and ov([r for r in sw if r!='vcc'],c.R): need,why=max(need,1),'valu sgpr->salu(pad)'
                if 'exec' in pW: need,why=5,'valu exec'
                if p.base.startswith('v_dot') and (c.valu or c.mfma or c.vmem or c.ds) and ov(vw,c.R+c.W):
                    same = c.base==p.base
                    srcab = sum((regs(o) for o in (c.ops[1:3])),[]) if same else []
                    if not same or ov(vw,srcab): need,why=max(need,3),'dot->other'
                if ('op_sel' in p.mods or p.op.endswith('_sdwa')) and c.valu and ov(vw,c.R): need,why=max(need,1),'opsel'
            if p.mfma:
                big={8:12,4:8}[p.passes]; mid={8:10,4:6}[p.passes]; war={8:7,4:3}[p.passes]
                if c.mfma:
                    if ov(p.D,c.A+c.B): need,why=big,'mfma D->mfma AB'
                    elif ov(p.D,c.C) and not (p.D==c.C and p.passes==c.passes): need,why=mid,'mfma D->mfma C partial'
                elif (c.valu or c.ds or c.vmem) and ov(p.D,c.R+c.W): need,why=big,'mfma D->valu/mem'
                if c.valu and ov(p.C,c.W): need,why=max(need,war),'mfma C WAR'
            if p.salu and 'm0' in pW and c.vmem and c.ldsdma: need,why=1,'m0->ldsdma'
            if p.vmem and getattr(p,'wide',False) and ov(p.data,c.W): need,why=2,'store data WAR'
            if need>dist: errs.append(f"{name}: hazard {why}: need {need} have {dist}\n    {p.text}\n    {c.text}")
            dist+=p.states
            if dist>=20: break
    return errs
import os
PROF=int(os.environ.get('PROF','0'))
PROF_OFF=0x5800000
class E:
    def __init__(s): s.L=[]; s.vi=0; s.vd=0; s.di=0; s.dd=0; s.nst=0
    def stamp(s,k):
        if PROF: s(f"s_memtime s[{68+2*k}:{69+2*k}]"); s.nst=max(s.nst,k+1)
    def __call__(s,t): s.L.append('  '+t)
    def label(s,l): s.L.append(l+':')
    def vm(s,t):
        if s.vi-s.vd>=62: s.wait(vm=s.vi-61)
        s(t); s.vi+=1; return s.vi
    def ds(s,t):
        if s.di-s.dd>=15: s.wait(ds=s.di-14)
        s(t); s.di+=1; return s.di
    def wait(s,vm=None,ds=None):
        p=[]
        if vm is not None and vm>s.vd:
            n=s.vi-vm; assert 0<=n<=63; p.append(f"vmcnt({n})"); s.vd=vm
        if ds is not None and ds>s.dd:
            n=s.di-ds; assert 0<=n<=15; p.append(f"lgkmcnt({n})"); s.dd=ds
        if p: s("s_waitcnt "+' '.join(p))
        return bool(p)
    def waitall(s): s.wait(vm=s.vi,ds=s.di)
    def lgkm0(s): s("s_waitcnt lgkmcnt(0)"); s.dd=s.di
    def nop(s,n): s(f"s_nop {n-1}")
CPF=int(os.environ.get('CPF','1'))
NPIECE={'qkv_kernel':2,'attn_kernel':1,'op_kernel':1,'gu_kernel':3,'downb_kernel':2}
def code_prefetch(e,target,sidx,va,tag,stmp=60):
    if not CPF: return
    L=f"cp_{tag}"
    e(f"s_cmp_ge_u32 s{sidx}, {NPIECE[target]}"); e(f"s_cbranch_scc1 {L}_skip")
    e(f"s_getpc_b64 s[{stmp}:{stmp+1}]"); e.label(L)
    e(f"s_lshl_b32 s{stmp+2}, s{sidx}, 13"); e(f"s_add_u32 s{stmp+2}, s{stmp+2}, {target}-{L}")
    e(f"s_add_u32 s{stmp}, s{stmp}, s{stmp+2}"); e(f"s_addc_u32 s{stmp+1}, s{stmp+1}, 0")
    e(f"v_lshlrev_b32 v{va}, 7, v1"); e(f"v_mov_b32 v{va+1}, s{stmp+1}"); e(f"v_add_co_u32 v{va}, vcc, s{stmp}, v{va}"); e.nop(2); e(f"v_addc_co_u32 v{va+1}, vcc, 0, v{va+1}, vcc")
    e(f"global_load_dword v{va+2}, v[{va}:{va+1}], off")
    e.label(f"{L}_skip")
class Module:
    def __init__(s): s.code=[]; s.kds=[]; s.launches=[]; s.errs=[]
    def add(s,name,e,vg,ag=0,sg=96):
        s.errs+=check_hazards(e.L,name)
        s.code.append(f".globl {name}\n.p2align 8\n.type {name},@function\n{name}:")
        if PROF:
            L=list(e.L); assert L[1].strip().startswith('s_cbranch_scc1');
            if L[1].strip().endswith('_end'): L[1]=f"  s_cbranch_scc1 {name}_exit"
            else: L[0:2],L[2:2]=[],[]; L[0:0]=["  s_nop 0","  s_nop 0"]+list(e.L[0:2])
            L[2:2]=["  s_memrealtime s[64:65]","  s_memtime s[66:67]"]+[f"  s_mov_b32 s{68+2*k}, 0" for k in range(12)]
            p=E(); p("s_mov_b64 exec, -1"); p("s_waitcnt vmcnt(0) lgkmcnt(0)"); p("s_memrealtime s[92:93]"); p("s_memtime s[94:95]")
            p("s_load_dwordx4 s[96:99], s[0:1], 64"); p("s_waitcnt lgkmcnt(0)")
            p("s_lshr_b32 s65, s96, 9"); p("s_and_b32 s65, s65, 31"); p("s_lshl_b32 s65, s65, 9"); p("s_add_u32 s65, s65, s2"); p("s_lshl_b32 s65, s65, 6")
            p(f"s_add_u32 s65, s65, {PROF_OFF}")
            p("s_mov_b32 s96, s98"); p("s_mov_b32 s97, s99"); p("s_mov_b32 s98, 0x10000000"); p("s_mov_b32 s99, 0x20000")
            p("v_mbcnt_lo_u32_b32 v1, -1, 0"); p("v_mbcnt_hi_u32_b32 v1, -1, v1"); p("v_lshrrev_b32 v0, 6, v0")
            p("v_lshlrev_b32 v2, 2, v0"); p("v_min_u32 v3, 1, v1"); p("v_lshl_or_b32 v2, v3, 31, v2"); p("v_mov_b32 v3, s92"); p("s_add_u32 s93, s65, 0x100000")
            p("buffer_store_dword v3, v2, s[96:99], s93 offen")
            p("v_mov_b32 v3, s66"); p("s_add_u32 s93, s65, 0x200000"); p("buffer_store_dword v3, v2, s[96:99], s93 offen")
            p(f"v_mov_b32 v3, s{68+2*int(os.environ.get('PWS','1'))}"); p("buffer_store_dword v3, v2, s[96:99], s93 offen offset:32")
            p("v_or_b32 v0, v0, v1")
            p("v_cmp_eq_u32 vcc, 0, v0"); p("s_and_b64 exec, exec, vcc"); p(f"s_cbranch_execz {name}_exit")
            p("v_mov_b32 v0, 0"); p("v_mov_b32 v2, s64"); p("v_mov_b32 v3, s92"); p("s_sub_u32 s94, s94, s66"); p("v_mov_b32 v4, s94"); p("s_getreg_b32 s93, hwreg(HW_REG_XCC_ID)"); p("v_mov_b32 v5, s93")
            p("buffer_store_dwordx4 v[2:5], v0, s[96:99], s65 offen")
            for q in range(3):
                for r in range(4):
                    k=4*q+r; p(f"s_sub_u32 s93, s{68+2*k}, s66"); p(f"s_cmp_eq_u32 s{68+2*k}, 0"); p("s_cselect_b32 s93, 0, s93"); p(f"v_mov_b32 v{6+4*q+r}, s93")
                p(f"buffer_store_dwordx4 v[{6+4*q}:{9+4*q}], v0, s[96:99], s65 offen offset:{16+16*q}")
            p.label(f"{name}_exit")
            e.L=L+p.L; sg=102
        s.code+=e.L; s.code.append("  s_endpgm"); s.code.append(f"{name}_fin:")
        acc=(vg+3)//4*4; nfv=vg if ag==0 else acc+ag
        s.kds.append(f""".p2align 6
.amdhsa_kernel {name}
  .amdhsa_next_free_vgpr {nfv}
  .amdhsa_next_free_sgpr {sg}
  .amdhsa_accum_offset {acc}
  .amdhsa_group_segment_fixed_size 0
  .amdhsa_kernarg_size 80
  .amdhsa_user_sgpr_count 2
  .amdhsa_user_sgpr_kernarg_segment_ptr 1
  .amdhsa_system_sgpr_workgroup_id_x 1
.end_amdhsa_kernel""")
    def launch(s,name,grid,block,lds=0): s.launches.append(f"; @launch kernel={name} grid=({grid},1,1) block=({block},1,1) lds={lds}")
    def text(s,hdr):
        return hdr+"\n"+"\n".join(s.launches)+'\n.amdgcn_target "amdgcn-amd-amdhsa--gfx950"\n.text\n'+"\n".join(s.code)+'\n.fill 2304, 4, 0xbf800000\n.section .rodata,"a"\n'+"\n".join(s.kds)+"\n"
def fl(x):
    import struct
    return "0x%08x"%struct.unpack('<I',struct.pack('<f',x))[0]
```

```python
from fw import *
from lay import *
import math, os
from k0 import side_entry, NG0
QS=DH**-0.5*math.log2(math.e)
def env(n,d): return int(os.environ.get(n,d))
def prologue_common(e,N,nwg,side=False,nxt=None,va=10):
    e(f"s_cmp_ge_u32 s2, {nwg}"); e(f"s_cbranch_scc1 {N}_side" if side else f"s_cbranch_scc1 {N}_end")
    e("s_load_dwordx2 s[4:5], s[0:1], 72")
    e("v_and_b32 v1, 63, v0"); e("v_lshrrev_b32 v2, 6, v0"); e("v_lshlrev_b32 v3, 4, v1")
    e("v_readfirstlane_b32 s20, v2")
    e("s_and_b32 s16, s2, 7"); e("s_lshr_b32 s17, s2, 3")
    if nxt:
        e("s_lshl_b32 s59, s17, 3"); e("s_add_u32 s59, s59, s20"); code_prefetch(e,nxt,59,va,N)
def k1(mod):
    e=E(); N='qkv_kernel'
    ACC=16; WF=80; NWF=6; TMP=104; RS=120; STT=136
    LA=env('K1LA',4); LEAD=env('K1LEAD',22); PRO=env('K1PRO',18); BUD=env('K1BUD',20)
    prologue_common(e,N,224,True,'attn_kernel',TMP)
    e("s_lshr_b32 s18, s16, 1"); e("s_lshl_b32 s18, s18, 2"); e("s_and_b32 s19, s17, 3"); e("s_add_u32 s18, s18, s19")
    e("s_and_b32 s19, s16, 1"); e("s_mul_i32 s19, s19, 7"); e("s_lshr_b32 s17, s17, 2"); e("s_add_u32 s19, s19, s17")
    e("s_lshl_b32 s18, s18, 2"); e("s_add_u32 s18, s18, s20")
    e(f"s_mul_i32 s21, s18, 36864"); e(f"s_add_u32 s21, s21, {WS['X0'][0]}")
    e(f"s_mul_i32 s22, s19, {144*1024}"); e(f"s_add_u32 s22, s22, {WS['WQKV'][0]}")
    e("s_lshl_b32 s31, s20, 10"); e("s_lshl_b32 s32, s20, 11"); e("s_mul_i32 s33, s20, 3072")
    e.lgkm0()
    srd_ptr(e,8,4,WSSIZE)
    sizes=[4,8]+[12]*11; start=[sum(sizes[:i]) for i in range(len(sizes)+1)]; assert start[-1]==144
    tokW={}; tokX={}; ts=[0]
    def mk_items():
        items=[]; lastd=-99
        for c,sz in enumerate(sizes):
            per=sz//4; sr=30+per
            for i in range(per):
                def f(c=c,i=i,sr=sr):
                    if i==0: e(f"s_add_u32 m0, s{sr}, {start[c]*1024}"); e(f"s_add_u32 s23, m0, s22")
                    tokW[c]=e.vm(f"buffer_load_dwordx4 v3, s[8:11], s23 offen offset:{1024*i} lds")
                lastd=max(lastd+0.01,start[c]-LA-1-(per-1-i)*4); items.append((lastd,f))
        for ks in range(36):
            def f(ks=ks):
                tokX[ks]=e.vm(f"buffer_load_dwordx4 a[{4*ks}:{4*ks+3}], v3, s[8:11], s21 offen offset:{1024*(ks%4)}")
                if ks%4==3: e("s_add_u32 s21, s21, 4096")
            items.append((3*ks,f))
        for i in range(8):
            def f(i=i): ts[0]=e.vm(f"buffer_load_dwordx2 v[{STT+2*i}:{STT+2*i+1}], v8, s[8:11], s30 offen"); e("s_add_u32 s30, s30, 16384")
            items.append((60+4*i+0.5,f))
        items.sort(key=lambda x:x[0]); return items
    items0=mk_items()
    while items0[0][0]<PRO: items0.pop(0)[1]()
    nleft=len(items0)
    e("v_add_u32 v4, 0x10000, v3"); e("v_add_u32 v5, 0x20000, v3")
    e("v_and_b32 v6, 31, v1"); e("v_lshrrev_b32 v7, 5, v1"); e("v_lshlrev_b32 v8, 17, v7"); e("v_lshl_or_b32 v8, v6, 3, v8")
    e("s_lshl_b32 s30, s18, 8"); e(f"s_add_u32 s30, s30, {WS['ST2'][0]}")
    e("s_cmp_ge_u32 s19, 9"); e(f"s_cbranch_scc1 {N}_v")
    st=(e.vi,e.vd,e.di,e.dd,dict(tokW),dict(tokX))
    seq=[(ks,j) for ks in range(36) for j in range(3)]+[(ks,3) for ks in range(36)]
    def V(s,c=4): return (c,lambda: e(s))
    def stats_ops():
        o=[(4,lambda: e.wait(vm=ts[0]))]
        for i in range(1,8): o+=[V(f"v_add_f32 v{STT}, v{STT}, v{STT+2*i}"),V(f"v_add_f32 v{STT+1}, v{STT+1}, v{STT+2*i+1}")]
        for s_ in [f"v_mov_b32 v12, v{STT}",f"v_mov_b32 v14, v{STT+1}","s_nop 1",f"v_permlane32_swap_b32 v12, v{STT}",f"v_permlane32_swap_b32 v14, v{STT+1}",
                   f"v_add_f32 v12, v12, v{STT}",f"v_add_f32 v14, v14, v{STT+1}",f"v_mul_f32 v12, {fl(1.0/D)}, v12",f"v_mul_f32 v14, {fl(1.0/D)}, v14",
                   "v_fma_f32 v14, -v12, v12, v14","v_max_f32 v14, 0, v14",f"v_add_f32 v14, {fl(1e-5)}, v14","v_rsq_f32 v12, v14"]: o.append(V(s_))
        return o
    def mainloop(normal,pre,epi):
        items=mk_items(); items=items[len(items)-nleft:]
        rt={}
        def rd(n):
            a=n*1024; b=WF+4*(n%NWF)
            rt[n]=e.ds(f"ds_read_b128 v[{b}:{b+3}], v{3+(a>>16)} offset:{a&0xffff}")
        e.stamp(0); e.wait(vm=tokW[0]); e("s_barrier"); e.stamp(1)
        for n in range(LA): rd(n)
        fq=[]
        for n,(ks,j) in enumerate(seq):
            m=n+LA; used=0
            if m<144 and m in start:
                c=start.index(m)
                while any(it[0]<=start[c]-LA for it in items): items.pop(0)[1]()
                e.wait(vm=tokW[c]); e("s_barrier"); used+=8
                if c in(4,7): e.stamp({4:2,7:3}[c])
            first = n<108 and j==0
            if first:
                while any(it[0]<=3*ks for it in items): items.pop(0)[1]()
            if n==94: fq+=stats_ops()+pre
            if n==108: e.stamp(4)
            if n==111:
                for jj in range(3): fq+=epi(jj)
            b=WF+4*(n%NWF)
            if e.wait(vm=tokX[ks] if first else None, ds=rt[n]): used+=4
            w=f"v[{b}:{b+3}]"; x=f"a[{4*ks}:{4*ks+3}]"; d=f"v[{ACC+16*j}:{ACC+16*j+15}]"
            a,bb=(x,w) if normal else (w,x)
            e(f"v_mfma_f32_32x32x16_bf16 {d}, {a}, {bb}, {d if ks else 0}")
            if m<144: rd(m); used+=4
            if items and (items[0][0]<n+LEAD or n>=96): items.pop(0)[1](); used+=8
            elif not items or n<108:
                while fq and used+fq[0][0]<=BUD: c_,f=fq.pop(0); f(); used+=c_
        assert not items
        e.stamp(5)
        for c_,f in fq: f()
        e.stamp(6)
    def scale_pack(j,mul):
        A=ACC+16*j; T=TMP+8*(j&1); o=[]
        for h in range(2):
            o+=[V(f"v_mul_f32 v{A+8*h+r}, {mul(8*h+r)}, v{A+8*h+r}") for r in range(8)]
            o+=[V(f"v_cvt_pk_bf16_f32 v{T+4*h+r}, v{A+8*h+2*r}, v{A+8*h+2*r+1}") for r in range(4)]
        return o
    pre=[V("s_mul_i32 s24, s19, 3"),V("s_lshl_b32 s25, s19, 2"),V("s_sub_u32 s25, s25, 4"),V("s_cmp_lt_u32 s19, 4"),V("s_cselect_b32 s24, s24, s25"),
         V("s_lshl_b32 s26, s18, 10"),V(f"s_add_u32 s26, s26, {WS['QM'][0]}")]
    def epi_main(j):
        T=TMP+8*(j&1)
        o=[V(f"s_add_u32 s27, s24, {j}"),V("s_cmp_ge_u32 s27, 16"),V(f"s_cselect_b32 s25, 1.0, {fl(QS)}"),V("v_mul_f32 v13, s25, v12"),
           V("s_lshl_b32 s28, s27, 17"),V("s_add_u32 s28, s28, s26"),V("s_add_u32 s29, s28, 0x10000")]
        sp=scale_pack(j,lambda r:"v13")
        o+=sp[:12]+[(8,lambda: e.vm(f"buffer_store_dwordx4 v[{T}:{T+3}], v3, s[8:11], s28 offen sc1"))]
        o+=sp[12:]+[(8,lambda: e.vm(f"buffer_store_dwordx4 v[{T+4}:{T+7}], v3, s[8:11], s29 offen sc1"))]
        return o
    mainloop(False,pre,epi_main)
    e("s_cmp_lt_u32 s19, 4"); e(f"s_cbranch_scc1 {N}_x")
    e.nop(4)
    for c_,f in epi_main(3): f()
    e(f"s_branch {N}_end")
    e.label(f"{N}_x")
    e("s_cmp_ge_u32 s19, 2"); e(f"s_cselect_b32 s25, 1.0, {fl(QS)}"); e("v_mul_f32 v13, s25, v12")
    e("v_lshlrev_b32 v6, 2, v6"); e("v_lshl_add_u32 v6, v7, 16, v6")
    e("s_lshl_b32 s28, s19, 17"); e("s_lshl_b32 s29, s18, 7"); e("s_add_u32 s28, s28, s29"); e(f"s_add_u32 s28, s28, {WS['QX'][0]}"); e.nop(2)
    for c_,f in scale_pack(3,lambda r:"v13"): f()
    for m_ in range(8):
        e(f"buffer_store_dword v{TMP+8+m_}, v6, s[8:11], s28 offen sc1")
        if m_<7: e("s_add_u32 s28, s28, 8192")
    e(f"s_branch {N}_end")
    assert WS['KM'][0]-WS['QM'][0]==1<<21 and WS['KX'][0]-WS['QX'][0]==1<<18
    e.label(f"{N}_v"); e.vi,e.vd,e.di,e.dd,t1,t2=st; tokW.update(t1); tokX.update(t2)
    tr=[0]
    def rsr(a):
        def f(): tr[0]=e.ds(f"ds_read_b128 v[{RS+4*a}:{RS+4*a+3}], v9 offset:{32*a}")
        return (4,f)
    pre=[V("s_lshl_b32 s28, s20, 7"),V("s_add_u32 s28, s28, 147456"),V("v_lshl_add_u32 v8, v6, 2, s28"),(4,lambda: e.ds("ds_write_b32 v8, v12")),V("v_lshl_add_u32 v9, v7, 4, s28")]
    pre+=[rsr(a) for a in range(4)]
    pre+=[V("v_mul_u32_u24 v7, 9216, v7"),V("v_lshl_add_u32 v7, v6, 4, v7"),V("s_mul_i32 s28, s18, 36864"),V(f"s_add_u32 s28, s28, {WS['VT'][0]-9*2048}"),
          V("s_lshl_b32 s24, s19, 11"),V("s_add_u32 s28, s28, s24"),V("s_add_u32 s29, s28, 18432"),
          V("s_cmp_eq_u32 s19, 13"),V(f"s_cselect_b32 s26, {WSSIZE}, s28"),V(f"s_cselect_b32 s27, {WSSIZE}, s29"),(4,lambda: e.wait(ds=tr[0]))]
    def epi_v(j):
        T=TMP+8*(j&1); s0,s1=(28,29) if j<2 else (26,27)
        sp=scale_pack(j,lambda r:f"v{RS+r}")
        return sp[:12]+[(8,lambda: e.vm(f"buffer_store_dwordx4 v[{T}:{T+3}], v7, s[8:11], s{s0} offen offset:{512*j} sc1"))]+sp[12:]+[(8,lambda: e.vm(f"buffer_store_dwordx4 v[{T+4}:{T+7}], v7, s[8:11], s{s1} offen offset:{512*j} sc1"))]
    mainloop(True,pre,epi_v)
    e.nop(12)
    for c_,f in epi_v(3): f()
    e(f"s_branch {N}_end")
    side_entry(e,N,f"{N}_side",224,[(144-NG0,NG0),(32-(144-NG0),144)] if NG0<=144 else [])
    e.label(f"{N}_end")
    mod.add(N,e,vg=152,ag=144,sg=64)
    return (N,224,256,147456+512)
```

```python
from fw import *
from lay import *
from k1 import prologue_common
import os, math
C1=-2*math.sqrt(2/math.pi)*math.log2(math.e); C2=C1*0.044715
P1=4
def env(n,d): return int(os.environ.get(n,d))
def k4(mod,N,XI):
    e=E()
    prologue_common(e,N,256)
    XV=14; ACC=46; NSET=5; WF=208; NWF=5; TMP=228; OUT=236; CON=244; EXT=252
    LA=env('K4LA',4); RING=144; BUD=env('K4BUD',20); LEAD=env('K4LEAD',34); LDC=env('K4LDC',8); SCH=env('K4SCH',36); PRO=env('K4PRO',18)
    LEAD2=env('K4LEAD2',72); SPR=env('K4SPR',0)
    e("s_and_b32 s18, s16, 1"); e("s_lshl_b32 s18, s18, 2"); e("s_and_b32 s19, s17, 3"); e("s_add_u32 s18, s18, s19")
    e("s_lshr_b32 s19, s16, 1"); e("s_lshl_b32 s19, s19, 3"); e("s_lshr_b32 s17, s17, 2"); e("s_add_u32 s19, s19, s17")
    e("s_lshl_b32 s18, s18, 3"); e("s_lshl_b32 s21, s20, 1"); e("s_add_u32 s18, s18, s21")
    e("s_mul_i32 s21, s18, 36864"); e(f"s_add_u32 s21, s21, {WS[XI][0]}"); e("s_add_u32 s22, s21, 36864")
    e(f"s_mul_i32 s23, s19, {324*1024}"); e(f"s_add_u32 s23, s23, {WS['WGU'][0]}")
    e("s_lshl_b32 s30, s20, 10"); e("s_lshl_b32 s31, s20, 11"); e("s_lshl_b32 s32, s20, 12"); e(f"s_mul_i32 s33, s20, {SCH//4*1024}")
    e.lgkm0()
    srd_ptr(e,8,4,WSSIZE)
    def xreg(ks,t):
        f=2*ks+t
        return f"a[{4*f}:{4*f+3}]" if f<64 else f"v[{XV+4*(f-64)}:{XV+4*(f-64)+3}]"
    NP1=36*P1
    sizes=[4,4,8]+[16]*8+[SCH]*((324-NP1)//SCH); start=[sum(sizes[:i]) for i in range(len(sizes)+1)]; assert start[-1]==324
    tokW={}; tokX={}; stt={}; items=[]
    for c,sz in enumerate(sizes):
        per=sz//4; sr={1:30,2:31,4:32,SCH//4:33}[per]
        need=start[c+1]-RING; cb=0
        while need>0 and start[max(cb-1,0)]<need: cb+=1
        for i in range(per):
            def f(c=c,i=i,sr=sr):
                if i%4==0:
                    e(f"s_add_u32 m0, s{sr}, {((start[c]%RING)+i)*1024}"); e(f"s_add_u32 s24, s{sr}, {(start[c]+i)*1024}"); e("s_add_u32 s24, s24, s23")
                tokW[c]=e.vm(f"buffer_load_dwordx4 v3, s[8:11], s24 offen offset:{1024*(i%4)} lds")
            items.append((start[c]-LA-1-(per-1-i)*4*SPR+i*0.01,cb,f))
    for ks in range(36):
        for t in range(2):
            def f(ks=ks,t=t):
                tokX[ks]=e.vm(f"buffer_load_dwordx4 {xreg(ks,t)}, v3, s[8:11], s{21+t} offen offset:{1024*(ks%4)}")
                if ks%4==3: e(f"s_add_u32 s{21+t}, s{21+t}, 4096")
            items.append((P1*ks+t*0.01,0,f))
    def sreg(i,t):
        k=2*i+t
        return ACC+32*P1+2*k if k<16 else EXT+2*(k-16)
    STN=env('K4STN',122)
    for i in range(9):
        for t in range(2):
            def f(i=i,t=t):
                r=sreg(i,t); stt[t]=e.vm(f"buffer_load_dwordx2 v[{r}:{r+1}], v5, s[8:11], s25 offen offset:{256*t}")
                if t==1: e("s_add_u32 s25, s25, 16384")
            items.append((STN-(9-i)*5+t*0.01,0,f))
    def sent(i):
        def f():
            if i==0:
                for r in range(4): e(f"v_mov_b32 v{EXT+r}, -1")
                e("s_mul_i32 s34, s2, 28672"); e("s_mul_i32 s35, s20, 7168"); e("s_add_u32 s34, s34, s35"); e(f"s_add_u32 s34, s34, {WS['P'][0]}")
            if i==4: e("s_add_u32 s34, s34, 4096")
            e.vm(f"buffer_store_dwordx4 v[{EXT}:{EXT+3}], v3, s[8:11], s34 offen offset:{1024*(i%4)} sc1")
        return f
    for i in range(7): items.append((230+3*i,0,sent(i)))
    def cpf():
        e("s_lshr_b32 s59, s2, 3"); e("s_lshl_b32 s59, s59, 2"); e("s_add_u32 s59, s59, s20"); code_prefetch(e,'downb_kernel',59,10,N)
    items.append((env('K4CPF',300),0,cpf))
    items.sort(key=lambda x:x[0])
    e("v_and_b32 v6, 31, v1"); e("v_lshrrev_b32 v7, 5, v1")
    while items and items[0][0]<PRO: items.pop(0)[2]()
    e("v_add_u32 v4, 0x10000, v3"); e("v_add_u32 v9, 0x20000, v3")
    e("v_mul_u32_u24 v5, 147456, v7"); e("v_lshl_add_u32 v5, v6, 3, v5")
    e("s_lshl_b32 s25, s18, 8"); e(f"s_add_u32 s25, s25, {WS['ST'][0]}")
    e("v_lshrrev_b32 v8, 4, v6"); e("v_mul_u32_u24 v8, 147456, v8"); e("v_and_b32 v6, 15, v6"); e("v_lshl_add_u32 v8, v6, 4, v8"); e("v_lshl_add_u32 v8, v7, 8, v8")
    e("s_mul_i32 s26, s18, 294912"); e("s_mul_i32 s27, s19, 4608"); e("s_add_u32 s26, s26, s27"); e(f"s_add_u32 s26, s26, {WS['H'][0]}"); e("s_add_u32 s27, s26, 294912")
    e("s_add_u32 s28, s26, 4096"); e("s_add_u32 s29, s27, 4096")
    def V(s,c=4): return (c,lambda: e(s))
    def stats_ops():
        ops=[]
        for t in range(2):
            a=sreg(0,t); c1,c2,vv=CON+3*t,CON+3*t+1,CON+3*t+2
            ops.append((4,lambda t=t: e.wait(vm=stt[t])))
            for i in range(1,9):
                ops+=[V(f"v_add_f32 v{a}, v{a}, v{sreg(i,t)}"),V(f"v_add_f32 v{a+1}, v{a+1}, v{sreg(i,t)+1}")]
            ops+=[V(f"v_mov_b32 v{TMP}, v{a}"),V(f"v_mov_b32 v{TMP+1}, v{a+1}"),V("s_nop 1",8)]
            ops+=[V(f"v_permlane32_swap_b32 v{TMP}, v{a}"),V(f"v_permlane32_swap_b32 v{TMP+1}, v{a+1}")]
            ops+=[V(f"v_add_f32 v{a}, v{a}, v{TMP}"),V(f"v_add_f32 v{a+1}, v{a+1}, v{TMP+1}")]
            ops+=[V(f"v_mul_f32 v{a}, {fl(1.0/D)}, v{a}"),V(f"v_mul_f32 v{a+1}, {fl(1.0/D)}, v{a+1}"),V(f"v_fma_f32 v{a+1}, -v{a}, v{a}, v{a+1}")]
            ops+=[V(f"v_max_f32 v{a+1}, 0, v{a+1}"),V(f"v_add_f32 v{vv}, {fl(1e-5)}, v{a+1}"),V(f"v_rsq_f32 v{a}, v{vv}",8),V("s_nop 0")]
            ops+=[V(f"v_mul_f32 v{c1}, {fl(C1)}, v{a}"),V(f"v_mul_f32 v{a+1}, v{a}, v{a}"),V(f"v_mul_f32 v{a+1}, v{a+1}, v{a}"),V(f"v_mul_f32 v{c2}, {fl(C2)}, v{a+1}")]
        return ops
    ecount=[0]
    def epi_ops(fs,ts=(0,1)):
        ops=[]
        for t in ts:
            A=ACC+32*(fs%NSET)+16*t; c1,c2,vv=CON+3*t,CON+3*t+1,CON+3*t+2
            O=OUT+4*(ecount[0]%2); ecount[0]+=1
            for hf in range(2):
                T=TMP+4*hf; g=A+4*hf; u=A+8+4*hf
                ops+=[V(f"v_mul_f32 v{T+i}, v{g+i}, v{g+i}") for i in range(4)]
                ops+=[V(f"v_fma_f32 v{T+i}, v{T+i}, v{c2}, v{c1}") for i in range(4)]
                ops+=[V(f"v_mul_f32 v{T+i}, v{T+i}, v{g+i}") for i in range(4)]
                for i in range(4): ops+=[V(f"v_exp_f32 v{T+i}, v{T+i}",8),V(f"v_mul_f32 v{u+i}, v{u+i}, v{g+i}")]
                ops+=[V(f"v_fma_f32 v{T+i}, v{T+i}, v{vv}, v{vv}") for i in range(4)]
                ops+=[V(f"v_rcp_f32 v{T+i}, v{T+i}",8) for i in range(4)]
                ops+=[V(f"v_mul_f32 v{u+i}, v{u+i}, v{T+i}") for i in range(4)]
                ops+=[V(f"v_cvt_pk_bf16_f32 v{O+2*hf+i}, v{u+2*i}, v{u+2*i+1}") for i in range(2)]
            so,off=(26+t,512*fs) if fs<8 else (28+t,0)
            ops.append((4,lambda O=O,so=so,off=off: e.vm(f"buffer_store_dwordx4 v[{O}:{O+3}], v8, s[8:11], s{so} offen offset:{off} sc1")))
        return ops
    seq=[(P1*ks+fs,ks,fs,(0,1)) for ks in range(36) for fs in range(P1)]+[(36*fs+ks,ks,fs,(0,1)) for fs in range(P1,8) for ks in range(36)]
    SPLIT=env('K4SPLIT',1)
    if SPLIT:
        seq+=[(288+ks,ks,8,(0,)) for ks in range(36)]+[(288+ks,ks,8,(1,)) for ks in range(36)]
    else: seq+=[(288+ks,ks,8,(0,1)) for ks in range(36)]
    rt={}
    def rd(n):
        a=(seq[n][0]%RING)*1024; b=WF+4*(n%NWF)
        rt[n]=e.ds(f"ds_read_b128 v[{b}:{b+3}], v{[3,4,9][a>>16]} offset:{a&0xffff}")
    e.stamp(0); e.wait(vm=tokW[0]); e("s_barrier"); e.stamp(1)
    cbar=0; fq=[]
    def can(it): return it[1]<=cbar
    def bar(c,n):
        nonlocal cbar
        while any(it[0]<=start[c]-LA for it in items): assert can(items[0]); items.pop(0)[2]()
        e.wait(vm=tokW[c]); e("s_barrier"); cbar=c
    for n in range(LA): rd(n)
    NS_=len(seq); gap=0
    for n,(pos,ks,fs,ts) in enumerate(seq):
        m=n+LA; used=0
        if m<324 and m in start:
            c=start.index(m); bar(c,n); used+=8
            st={5:2,8:3,11:4,12:5,13:6,15:7}.get(c) if SCH==36 else None
            if st: e.stamp(st)
        if n<NP1 and fs==0:
            while any(it[0]<=P1*ks+0.5 for it in items): assert can(items[0]); items.pop(0)[2]()
        if n==STN: fq.extend((None,o) for o in stats_ops())
        if n==NP1: assert not fq, 'stats late'
        if n>=NP1 and ks==0 and 0 in ts: assert not any(tag==fs-NSET for tag,_ in fq), f"epilogue of {fs-NSET} late"
        if n>=NP1 and ks==4:
            if fs==P1:
                for k in range(P1): fq.extend((k,o) for o in epi_ops(k))
            elif 0 in ts: fq.extend((fs-1,o) for o in epi_ops(fs-1))
            else: fq.extend((8,o) for o in epi_ops(8,(0,)))
        b=WF+4*(n%NWF)
        for t in ts:
            first = t==ts[0]
            if first and e.wait(vm=tokX[ks] if (n<NP1 and fs==0) else None, ds=rt[n]): used+=4
            d=f"v[{ACC+32*(fs%NSET)+16*t}:{ACC+32*(fs%NSET)+16*t+15}]"
            e(f"v_mfma_f32_32x32x16_bf16 {d}, v[{b}:{b+3}], {xreg(ks,t)}, {d if ks else 0}")
            if first and m<NS_: rd(m); used+=4
            if t==1 and items and items[0][0]<n+(LEAD if n<NP1-LEAD else LEAD2) and can(items[0]): items.pop(0)[2](); used+=LDC
            while fq and used+fq[0][1][0]<=BUD: c_,f=fq.pop(0)[1]; f(); used+=c_
            used=0
    e.stamp(8)
    print("K4 leftover filler cycles:",sum(o[0] for _,o in fq),file=__import__('sys').stderr)
    for _,(c_,f) in fq: f()
    e.nop(12)
    for c_,f in epi_ops(8,(1,) if SPLIT else (0,1)): f()
    e.stamp(9)
    e.label(f"{N}_end")
    mod.add(N,e,vg=256,ag=256,sg=64)
    return (N,256,256,RING*1024)
```

```python
import re
TRANS=('v_exp_f32','v_log_f32','v_rcp_f32','v_rsq_f32','v_sqrt_f32','v_sin_f32','v_cos_f32')
def regs(op):
    op=op.strip()
    if op.startswith('-'): op=op[1:]
    m=re.fullmatch(r'abs\((.*)\)',op)
    if m: op=m.group(1)
    m=re.fullmatch(r'\|(.*)\|',op)
    if m: op=m.group(1)
    m=re.fullmatch(r'([vas])(\d+)',op)
    if m: return [op]
    m=re.fullmatch(r'([vas])\[(\d+):(\d+)\]',op)
    if m: return [f"{m.group(1)}{i}" for i in range(int(m.group(2)),int(m.group(3))+1)]
    if op in('vcc','exec','m0','scc'): return [op]
    if op in('vcc_lo','vcc_hi'): return ['vcc']
    if op in('exec_lo','exec_hi'): return ['exec']
    return []
class Ins:
    def __init__(s,text):
        s.text=text; t=text.split(';')[0].strip()
        parts=t.split(None,1); s.op=parts[0]; rest=parts[1] if len(parts)>1 else ''
        ops=[o.strip() for o in re.split(r',(?![^\[]*\])',rest)] if rest else []
        if ops:
            last=ops[-1].split(); s.mods=' '.join(last[1:]); ops[-1]=last[0] if last else ''
        else: s.mods=''
        s.ops=ops; op=s.op
        for suf in('_e32','_e64','_dpp','_sdwa'):
            if op.endswith(suf): op=op[:-len(suf)]
        s.base=op
        s.dpp=s.op.endswith('_dpp')
        s.mfma=op.startswith('v_mfma'); s.valu=op.startswith('v_') and not s.mfma
        s.trans=op in TRANS; s.ds=op.startswith('ds_'); s.vmem=op.startswith(('buffer_','global_','flat_'))
        s.salu=op.startswith('s_'); s.W=[]; s.R=[]; s.states=1
        s.ldsdma = s.vmem and (' lds' in ' '+s.mods or 'load_lds' in op)
        if op=='s_nop': s.states=int(ops[0],0)+1
        if s.mfma:
            s.D=regs(ops[0]); s.A=regs(ops[1]); s.B=regs(ops[2]); s.C=regs(ops[3]); s.W=s.D; s.R=s.A+s.B+s.C
            s.passes = 8 if '32x32' in op else 4
        elif s.valu:
            if op.startswith('v_cmp'): s.W=regs(ops[0]); s.R=sum((regs(o) for o in ops[1:]),[])
            elif 'permlane' in op and 'swap' in op: s.W=regs(ops[0])+regs(ops[1]); s.R=list(s.W)
            elif op in('v_add_co_u32','v_sub_co_u32','v_addc_co_u32','v_subb_co_u32'):
                s.W=regs(ops[0])+regs(ops[1]); s.R=sum((regs(o) for o in ops[2:]),[])
            else:
                s.W=regs(ops[0]); s.R=sum((regs(o) for o in ops[1:]),[])
                if op in('v_fmac_f32','v_dot2c_f32_bf16','v_pk_fmac_f16') or s.dpp or s.op.endswith('_sdwa'): s.R+=s.W
        elif s.ds:
            if 'read' in op or 'permute' in op or 'swizzle' in op: s.W=regs(ops[0]); s.R=sum((regs(o) for o in ops[1:]),[])
            else: s.R=sum((regs(o) for o in ops),[])
        elif s.vmem:
            if 'load' in op and not s.ldsdma: s.W=regs(ops[0]); s.R=sum((regs(o) for o in ops[1:]),[])
            else: s.R=sum((regs(o) for o in ops),[])
            if s.ldsdma: s.R+=['m0']
            s.wide = 'store' in op and ('x3' in op or 'x4' in op)
            if s.wide: s.data=regs(ops[0]) if op.startswith('buffer') else regs(ops[1])
        elif s.salu:
            if op.startswith(('s_cmp','s_cbranch','s_branch','s_waitcnt','s_barrier','s_nop','s_endpgm','s_setprio','s_sleep')): s.R=sum((regs(o) for o in ops),[])
            else:
                s.W=regs(ops[0]); s.R=sum((regs(o) for o in ops[1:]),[])
                if 'saveexec' in op: s.W+=['exec']
def check_hazards(lines,name=''):
    ins=[]
    for l in lines:
        t=l.split(';')[0].strip()
        if not t or t.endswith(':') or t.startswith('.'): continue
        ins.append(Ins(t))
    errs=[]
    for j,c in enumerate(ins):
        dist=0
        for i in range(j-1,max(-1,j-24),-1):
            p=ins[i]; need=0; why=''
            def ov(a,b): return set(a)&set(b)
            pW=[r for r in p.W];
            if p.valu:
                vw=[r for r in pW if r[0] in 'va' and r!='vcc']; sw=[r for r in pW if r[0]=='s' or r=='vcc']
                if c.mfma and ov(vw,c.R): need,why=2,'valu->mfma'
                if p.trans and c.valu and not c.trans and ov(vw,c.R): need,why=max(need,1),'trans->valu'
                if c.valu and ('permlane' in c.base or c.dpp) and ov(vw,c.R): need,why=2,'valu->permlane/dpp'
                if c.valu and c.base in('v_readfirstlane_b32','v_readlane_b32') and ov(vw,c.R): need,why=max(need,1),'valu->readlane'
                if c.valu and ov(sw,c.R): need,why=max(need,2),'valu sgpr->valu'
                if c.vmem and ov(sw,c.R): need,why=5,'valu sgpr->vmem'
                if c.salu and ov([r for r in sw if r!='vcc'],c.R): need,why=max(need,1),'valu sgpr->salu(pad)'
                if 'exec' in pW: need,why=5,'valu exec'
                if p.base.startswith('v_dot') and (c.valu or c.mfma or c.vmem or c.ds) and ov(vw,c.R+c.W):
                    same = c.base==p.base
                    srcab = sum((regs(o) for o in (c.ops[1:3])),[]) if same else []
                    if not same or ov(vw,srcab): need,why=max(need,3),'dot->other'
                if ('op_sel' in p.mods or p.op.endswith('_sdwa')) and c.valu and ov(vw,c.R): need,why=max(need,1),'opsel'
            if p.mfma:
                big={8:12,4:8}[p.passes]; mid={8:10,4:6}[p.passes]; war={8:7,4:3}[p.passes]
                if c.mfma:
                    if ov(p.D,c.A+c.B): need,why=big,'mfma D->mfma AB'
                    elif ov(p.D,c.C) and not (p.D==c.C and p.passes==c.passes): need,why=mid,'mfma D->mfma C partial'
                elif (c.valu or c.ds or c.vmem) and ov(p.D,c.R+c.W): need,why=big,'mfma D->valu/mem'
                if c.valu and ov(p.C,c.W): need,why=max(need,war),'mfma C WAR'
            if p.salu and 'm0' in pW and c.vmem and c.ldsdma: need,why=1,'m0->ldsdma'
            if p.vmem and getattr(p,'wide',False) and ov(p.data,c.W): need,why=2,'store data WAR'
            if need>dist: errs.append(f"{name}: hazard {why}: need {need} have {dist}\n    {p.text}\n    {c.text}")
            dist+=p.states
            if dist>=20: break
    return errs
import os
PROF=int(os.environ.get('PROF','0'))
PROF_OFF=0x5800000
class E:
    def __init__(s): s.L=[]; s.vi=0; s.vd=0; s.di=0; s.dd=0; s.nst=0
    def stamp(s,k):
        if getattr(s,'smap',None) is not None:
            k=s.smap.get(k)
            if k is None: return
        if PROF: s(f"s_memtime s[{68+2*k}:{69+2*k}]"); s.nst=max(s.nst,k+1)
    def __call__(s,t): s.L.append('  '+t)
    def label(s,l): s.L.append(l+':')
    def vm(s,t):
        if s.vi-s.vd>=62: s.wait(vm=s.vi-61)
        s(t); s.vi+=1; return s.vi
    def ds(s,t):
        if s.di-s.dd>=15: s.wait(ds=s.di-14)
        s(t); s.di+=1; return s.di
    def wait(s,vm=None,ds=None):
        p=[]
        if vm is not None and vm>s.vd:
            n=s.vi-vm; assert 0<=n<=63; p.append(f"vmcnt({n})"); s.vd=vm
        if ds is not None and ds>s.dd:
            n=s.di-ds; assert 0<=n<=15; p.append(f"lgkmcnt({n})"); s.dd=ds
        if p: s("s_waitcnt "+' '.join(p))
        return bool(p)
    def waitall(s): s.wait(vm=s.vi,ds=s.di)
    def lgkm0(s): s("s_waitcnt lgkmcnt(0)"); s.dd=s.di
    def nop(s,n): s(f"s_nop {n-1}")
CPF=int(os.environ.get('CPF','1'))
NPIECE={'qkv_kernel':2,'attn_kernel':1,'op_kernel':1,'gu_kernel':3,'downb_kernel':2,'ffnb_kernel':3,'down_part':2}
def code_prefetch(e,target,sidx,va,tag,stmp=60):
    if not CPF: return
    L=f"cp_{tag}"
    e(f"s_cmp_ge_u32 s{sidx}, {NPIECE[target]}"); e(f"s_cbranch_scc1 {L}_skip")
    e(f"s_getpc_b64 s[{stmp}:{stmp+1}]"); e.label(L)
    e(f"s_lshl_b32 s{stmp+2}, s{sidx}, 13"); e(f"s_add_u32 s{stmp+2}, s{stmp+2}, {target}-{L}")
    e(f"s_add_u32 s{stmp}, s{stmp}, s{stmp+2}"); e(f"s_addc_u32 s{stmp+1}, s{stmp+1}, 0")
    e(f"v_lshlrev_b32 v{va}, 7, v1"); e(f"v_mov_b32 v{va+1}, s{stmp+1}"); e(f"v_add_co_u32 v{va}, vcc, s{stmp}, v{va}"); e.nop(2); e(f"v_addc_co_u32 v{va+1}, vcc, 0, v{va+1}, vcc")
    e(f"global_load_dword v{va+2}, v[{va}:{va+1}], off")
    e.label(f"{L}_skip")
class Module:
    def __init__(s): s.code=[]; s.kds=[]; s.launches=[]; s.errs=[]
    def add(s,name,e,vg,ag=0,sg=96):
        s.errs+=check_hazards(e.L,name)
        s.code.append(f".globl {name}\n.p2align 8\n.type {name},@function\n{name}:")
        if PROF:
            L=list(e.L); assert L[1].strip().startswith('s_cbranch_scc1');
            if L[1].strip().endswith('_end'): L[1]=f"  s_cbranch_scc1 {name}_exit"
            else: L[0:2],L[2:2]=[],[]; L[0:0]=["  s_nop 0","  s_nop 0"]+list(e.L[0:2])
            L[2:2]=["  s_memrealtime s[64:65]","  s_memtime s[66:67]"]+[f"  s_mov_b32 s{68+2*k}, 0" for k in range(12)]
            p=E(); p("s_mov_b64 exec, -1"); p("s_waitcnt vmcnt(0) lgkmcnt(0)"); p("s_memrealtime s[92:93]"); p("s_memtime s[94:95]")
            p("s_load_dwordx4 s[96:99], s[0:1], 64"); p("s_waitcnt lgkmcnt(0)")
            p("s_lshr_b32 s65, s96, 9"); p("s_and_b32 s65, s65, 31"); p("s_lshl_b32 s65, s65, 9"); p("s_add_u32 s65, s65, s2"); p("s_lshl_b32 s65, s65, 6")
            p(f"s_add_u32 s65, s65, {PROF_OFF}")
            p("s_mov_b32 s96, s98"); p("s_mov_b32 s97, s99"); p("s_mov_b32 s98, 0x10000000"); p("s_mov_b32 s99, 0x20000")
            p("v_mbcnt_lo_u32_b32 v1, -1, 0"); p("v_mbcnt_hi_u32_b32 v1, -1, v1"); p("v_lshrrev_b32 v0, 6, v0")
            p("v_lshlrev_b32 v2, 2, v0"); p("v_min_u32 v3, 1, v1"); p("v_lshl_or_b32 v2, v3, 31, v2"); p("v_mov_b32 v3, s92"); p("s_add_u32 s93, s65, 0x100000")
            p("buffer_store_dword v3, v2, s[96:99], s93 offen")
            p("v_mov_b32 v3, s66"); p("s_add_u32 s93, s65, 0x200000"); p("buffer_store_dword v3, v2, s[96:99], s93 offen")
            p(f"v_mov_b32 v3, s{68+2*int(os.environ.get('PWS','1'))}"); p("buffer_store_dword v3, v2, s[96:99], s93 offen offset:32")
            p("v_or_b32 v0, v0, v1")
            p("v_cmp_eq_u32 vcc, 0, v0"); p("s_and_b64 exec, exec, vcc"); p(f"s_cbranch_execz {name}_exit")
            p("v_mov_b32 v0, 0"); p("v_mov_b32 v2, s64"); p("v_mov_b32 v3, s92"); p("s_sub_u32 s94, s94, s66"); p("v_mov_b32 v4, s94"); p("s_getreg_b32 s93, hwreg(HW_REG_XCC_ID)"); p("v_mov_b32 v5, s93")
            p("buffer_store_dwordx4 v[2:5], v0, s[96:99], s65 offen")
            for q in range(3):
                for r in range(4):
                    k=4*q+r; p(f"s_sub_u32 s93, s{68+2*k}, s66"); p(f"s_cmp_eq_u32 s{68+2*k}, 0"); p("s_cselect_b32 s93, 0, s93"); p(f"v_mov_b32 v{6+4*q+r}, s93")
                p(f"buffer_store_dwordx4 v[{6+4*q}:{9+4*q}], v0, s[96:99], s65 offen offset:{16+16*q}")
            p.label(f"{name}_exit")
            e.L=L+p.L; sg=102
        s.code+=e.L; s.code.append("  s_endpgm"); s.code.append(f"{name}_fin:")
        acc=(vg+3)//4*4; nfv=vg if ag==0 else acc+ag
        s.kds.append(f""".p2align 6
.amdhsa_kernel {name}
  .amdhsa_next_free_vgpr {nfv}
  .amdhsa_next_free_sgpr {sg}
  .amdhsa_accum_offset {acc}
  .amdhsa_group_segment_fixed_size 0
  .amdhsa_kernarg_size 80
  .amdhsa_user_sgpr_count 2
  .amdhsa_user_sgpr_kernarg_segment_ptr 1
  .amdhsa_system_sgpr_workgroup_id_x 1
.end_amdhsa_kernel""")
    def launch(s,name,grid,block,lds=0): s.launches.append(f"; @launch kernel={name} grid=({grid},1,1) block=({block},1,1) lds={lds}")
    def text(s,hdr):
        return hdr+"\n"+"\n".join(s.launches)+'\n.amdgcn_target "amdgcn-amd-amdhsa--gfx950"\n.text\n'+"\n".join(s.code)+'\n.fill 2304, 4, 0xbf800000\n.section .rodata,"a"\n'+"\n".join(s.kds)+"\n"
def fl(x):
    import struct
    return "0x%08x"%struct.unpack('<I',struct.pack('<f',x))[0]
```

```python
from fw import *
from lay import *
from k_ln import *
import os
LDSW=73728
NT=' nt' if int(os.environ.get('K0NT','1')) else ''
NG0=int(os.environ.get('K0NG','124'))
def side_entry(e,N,label,first,table):
    e.label(label)
    e("s_cmp_ge_u32 s2, 256"); e(f"s_cbranch_scc1 {N}_end")
    e("v_cmp_gt_u32 vcc, 256, v0"); e("s_and_b64 exec, exec, vcc"); e(f"s_cbranch_execz {N}_end")
    e("s_mov_b32 s44, 256"); lo=first
    for cnt,u0 in table:
        e(f"s_add_u32 s45, s2, {u0-lo}" if u0>=lo else f"s_sub_u32 s45, s2, {lo-u0}"); e(f"s_cmp_ge_u32 s2, {lo}"); e("s_cselect_b32 s44, s45, s44"); lo+=cnt
    e(f"s_cmp_ge_u32 s2, {lo}"); e(f"s_cbranch_scc1 {N}_end")
    e("s_mov_b32 s45, 0"); e("s_branch prep_common")
def k0(mod):
    e=E(); N='prep_kernel'
    e("s_cmp_ge_u32 s2, 256"); e(f"s_cbranch_scc1 {N}_end")
    e("s_add_u32 s44, s2, 216"); e("s_sub_u32 s45, s2, 40"); e("s_cmp_lt_u32 s2, 40"); e("s_cselect_b32 s44, s44, s45")
    e(f"s_cmp_lt_u32 s2, {40+NG0}"); e("s_cselect_b32 s44, s44, 256"); e("s_mov_b32 s45, 1")
    e.label("prep_common")
    e("s_load_dwordx4 s[36:39], s[0:1], 0")
    e("s_load_dwordx2 s[40:41], s[0:1], 16")
    e("s_load_dwordx4 s[52:55], s[0:1], 32")
    e("s_load_dwordx2 s[48:49], s[0:1], 48")
    e("s_load_dwordx2 s[50:51], s[0:1], 72")
    e("v_and_b32 v1, 63, v0"); e("v_lshrrev_b32 v2, 6, v0"); e("v_and_b32 v3, 7, v1")
    e("v_readfirstlane_b32 s20, v2")
    e("s_lshr_b32 s59, s2, 3"); e("s_lshl_b32 s59, s59, 2"); e("s_add_u32 s59, s59, s20"); code_prefetch(e,'qkv_kernel',59,44,'prep')
    e("v_lshrrev_b32 v4, 3, v1")
    e("v_mul_u32_u24 v5, 1152, v3"); e("v_lshl_add_u32 v5, v4, 4, v5")
    e("s_mov_b32 s21, 0x3f803f80")
    e("s_mul_i32 s24, s20, 18432")
    e("s_mul_i32 s22, s2, 9216"); e("s_mul_i32 s23, s20, 384"); e("s_add_u32 s22, s22, s23")
    e("s_cmp_eq_u32 s20, 3"); e(f"s_cselect_b32 s22, {XB}, s22")
    e.lgkm0()
    srd_ptr(e,16,36,XB)
    srd_ptr(e,12,50,WSSIZE)
    srd_ptr(e,8,48,DF*D*2)
    e("s_cmp_eq_u32 s45, 0"); e(f"s_cbranch_scc1 {N}_nox")
    for i in range(3): e(f"buffer_load_dwordx4 v[{8+4*i}:{11+4*i}], v5, s[16:19], s22 offen offset:{128*i}")
    e.label(f"{N}_nox")
    e("s_cmp_lt_u32 s44, 144"); e(f"s_cbranch_scc1 {N}_ldG")
    e("s_cmp_lt_u32 s44, 216"); e(f"s_cbranch_scc1 {N}_ldD")
    e("s_cmp_lt_u32 s44, 243"); e(f"s_cbranch_scc1 {N}_ldQ")
    e("s_cmp_lt_u32 s44, 252"); e(f"s_cbranch_scc1 {N}_ldWo")
    e("s_cmp_eq_u32 s44, 256"); e(f"s_cbranch_scc1 {N}_none")
    e("s_cmp_eq_u32 s44, 252"); e(f"s_cbranch_scc1 {N}_zero")
    e("v_mov_b32 v24, s21"); e("v_lshlrev_b32 v20, 2, v1"); e("v_cmp_gt_u32 vcc, 16, v0"); e("s_and_saveexec_b64 s[26:27], vcc"); e(f"s_cbranch_execz {N}_ones1")
    e(f"s_mov_b32 s25, {WS['VT'][0]+XB}"); e("buffer_store_dword v24, v20, s[12:15], s25 offen sc1")
    e.label(f"{N}_ones1"); e("s_mov_b64 exec, s[26:27]")
    e(f"s_branch {N}_none")
    e.label(f"{N}_zero")
    for r in range(4): e(f"v_mov_b32 v{24+r}, 0")
    e("v_lshlrev_b32 v20, 4, v1")
    e("s_mul_i32 s25, s20, 27648"); e(f"s_add_u32 s25, s25, {WS['WQKV'][0]+(13*144+2)*1024}"); e("s_mov_b32 s26, 0")
    e("s_mul_i32 s27, s20, 9216"); e(f"s_add_u32 s27, s27, {WS['WQKV'][0]+(13*144+108)*1024}")
    e.label(f"{N}_zerol")
    e("buffer_store_dwordx4 v[24:27], v20, s[12:15], s25 offen sc1"); e("buffer_store_dwordx4 v[24:27], v20, s[12:15], s27 offen sc1"); e("s_add_u32 s25, s25, 3072"); e("s_add_u32 s27, s27, 1024")
    e("s_add_u32 s26, s26, 1"); e("s_cmp_lt_u32 s26, 9"); e(f"s_cbranch_scc1 {N}_zerol")
    e.label(f"{N}_none")
    e("s_waitcnt vmcnt(0)"); e(f"s_branch {N}_ln")
    e.label(f"{N}_ldQ")
    srd_ptr(e,8,38,D*3*D*2); e("s_mov_b32 s28, 3456"); e("s_sub_u32 s26, s44, 216"); e(f"s_branch {N}_ldG2")
    e.label(f"{N}_ldG")
    e("s_cmp_ge_u32 s44, 72"); e("s_cselect_b32 s8, s54, s52"); e("s_cselect_b32 s9, s55, s53"); e("s_cselect_b32 s26, 72, 0"); e("s_cselect_b32 s27, 1, 0")
    e("s_sub_u32 s26, s44, s26"); e("s_mov_b32 s28, 9216")
    e.label(f"{N}_ldG2")
    e("v_mul_lo_u32 v20, v4, s28"); e("v_lshl_add_u32 v20, v3, 4, v20")
    e("s_lshl_b32 s25, s26, 7"); e("s_mul_i32 s29, s20, 144"); e("s_mul_i32 s29, s29, s28"); e("s_add_u32 s25, s25, s29"); e("s_lshl_b32 s29, s28, 3")
    for i in range(18):
        e(f"s_add_u32 m0, s24, {1024*i}")
        if i: e("s_add_u32 s25, s25, s29")
        else: e.nop(1)
        e(f"buffer_load_dwordx4 v20, s[8:11], s25 offen{NT} lds")
    e(f"s_branch {N}_w18")
    e.label(f"{N}_ldD")
    e("s_sub_u32 s26, s44, 144"); e("s_mul_i32 s25, s26, 73728"); e("s_lshr_b32 s29, s20, 1"); e("s_mul_i32 s29, s29, 36864"); e("s_add_u32 s25, s25, s29")
    e("s_and_b32 s29, s20, 1"); e("s_mul_i32 s29, s29, 576"); e("s_add_u32 s25, s25, s29")
    e("v_cmp_le_u32 vcc, 36, v1"); e("v_lshlrev_b32 v23, 4, v1"); e("v_add_u32 v24, 576, v23"); e("v_subrev_u32 v22, 36, v1")
    e("v_cndmask_b32 v23, v23, v24, vcc"); e("v_cndmask_b32 v22, v1, v22, vcc")
    for i in range(18):
        e(f"s_add_u32 m0, s24, {1024*i}"); e.nop(1)
        e(f"buffer_load_dwordx4 v23, s[8:11], s25 offen{NT} lds")
        if i<17:
            e("v_add_u32 v22, 28, v22"); e("v_cmp_le_u32 vcc, 36, v22"); e("v_add_u32 v23, 1600, v23"); e("v_add_u32 v24, 576, v23")
            e("v_subrev_u32 v25, 36, v22"); e("v_cndmask_b32 v23, v23, v24, vcc"); e("v_cndmask_b32 v22, v22, v25, vcc")
    e(f"s_branch {N}_w18")
    e.label(f"{N}_ldWo")
    srd_ptr(e,8,40,D*D*2); e("s_sub_u32 s26, s44, 243")
    e("s_lshl_b32 s31, s26, 6"); e("s_lshl_b32 s29, s20, 4"); e("s_add_u32 s31, s31, s29")
    e("v_mov_b32 v21, s31"); e("v_mov_b32 v22, v1"); e("s_mov_b32 s30, 0")
    e.label(f"{N}_wol")
    e("v_lshrrev_b32 v26, 4, v21"); e("v_mul_u32_u24 v26, 18, v26")
    e("v_and_b32 v27, 3, v21"); e("v_add_u32 v26, v26, v27")
    e("v_bfe_u32 v27, v21, 3, 1"); e("v_lshl_add_u32 v26, v27, 2, v26")
    e("v_bfe_u32 v27, v21, 2, 1"); e("v_lshl_add_u32 v26, v27, 3, v26")
    e("v_bfe_u32 v27, v21, 1, 5"); e("v_mul_u32_u24 v27, 18, v27"); e("v_and_b32 v28, 1, v21")
    e("v_cmp_le_u32 vcc, 512, v21"); e("v_add3_u32 v27, v27, v28, 16")
    e("s_add_u32 m0, s24, s30")
    e("v_cndmask_b32 v26, v26, v27, vcc")
    e("v_mul_u32_u24 v23, 1152, v26"); e("v_lshl_add_u32 v23, v22, 4, v23")
    e(f"buffer_load_dwordx4 v23, s[8:11], 0 offen{NT} lds")
    e("v_add_u32 v22, 64, v22"); e("v_cmp_le_u32 vcc, 72, v22"); e("v_subrev_u32 v24, 72, v22"); e("s_add_u32 s30, s30, 1024")
    e("v_cndmask_b32 v22, v22, v24, vcc"); e("v_addc_co_u32 v21, vcc, 0, v21, vcc")
    e("s_cmp_lt_u32 s30, 18432"); e(f"s_cbranch_scc1 {N}_wol")
    e.label(f"{N}_w18")
    e("s_waitcnt vmcnt(18)")
    e.label(f"{N}_ln"); e.stamp(0)
    e("s_cmp_eq_u32 s45, 0"); e(f"s_cbranch_scc1 {N}_lnskip")
    e("v_lshlrev_b32 v6, 9, v4"); e("v_lshl_add_u32 v6, v3, 4, v6")
    e("s_lshr_b32 s29, s2, 2"); e("s_mul_i32 s29, s29, 36864"); e("s_mul_i32 s33, s20, 12288"); e("s_add_u32 s29, s29, s33")
    e("s_and_b32 s33, s2, 3"); e("s_lshl_b32 s33, s33, 7"); e("s_add_u32 s29, s29, s33")
    e("s_cmp_eq_u32 s20, 3"); e(f"s_cbranch_scc1 {N}_zf")
    e(f"s_add_u32 s33, s29, {WS['X0'][0]}")
    for i in range(3):
        e(f"buffer_store_dwordx4 v[{8+4*i}:{11+4*i}], v6, s[12:15], s33 offen sc1")
        if i<2: e("s_add_u32 s33, s33, 4096")
    e("v_mov_b32 v28, 0"); e("v_mov_b32 v29, 0")
    for r in range(12):
        e(f"v_dot2c_f32_bf16 v28, s21, v{8+r}"); e(f"v_dot2c_f32_bf16 v29, v{8+r}, v{8+r}")
    e("v_min_u32 v7, 1, v4"); e("v_lshlrev_b32 v7, 31, v7"); e("v_lshl_or_b32 v7, v3, 3, v7")
    red8(e,28,31); red8(e,29,31)
    e("s_lshl_b32 s33, s20, 14"); e("s_lshl_b32 s34, s2, 6"); e("s_add_u32 s33, s33, s34"); e(f"s_add_u32 s33, s33, {WS['ST2'][0]}")
    e("buffer_store_dwordx2 v[28:29], v7, s[12:15], s33 offen sc1")
    e("s_waitcnt vmcnt(4)"); e(f"s_branch {N}_ln2")
    e.label(f"{N}_zf")
    e("v_mov_b32 v8, 0"); e("v_mov_b32 v9, 0"); e("v_lshlrev_b32 v7, 3, v1"); e("s_lshl_b32 s33, s2, 9"); e(f"s_add_u32 s33, s33, {WS['FL'][0]}")
    e("buffer_store_dwordx2 v[8:9], v7, s[12:15], s33 offen sc1")
    e("v_lshlrev_b32 v7, 14, v4"); e("v_lshl_or_b32 v7, v3, 3, v7"); e("s_lshl_b32 s33, s2, 6"); e(f"s_add_u32 s33, s33, {WS['ST2'][0]+3*16384}"); e("s_add_u32 s34, s33, 81920")
    e("buffer_store_dwordx2 v[8:9], v7, s[12:15], s33 offen sc1"); e("buffer_store_dwordx2 v[8:9], v7, s[12:15], s34 offen sc1")
    e("s_waitcnt vmcnt(3)"); e(f"s_branch {N}_ln2")
    e.label(f"{N}_lnskip"); e("s_waitcnt vmcnt(0)")
    e.label(f"{N}_ln2"); e.stamp(1)
    e("s_cmp_ge_u32 s44, 252"); e(f"s_cbranch_scc1 {N}_end")
    e("v_lshrrev_b32 v20, 4, v1"); e("v_bfe_u32 v21, v1, 2, 2"); e("v_and_b32 v22, 3, v1")
    e("v_lshrrev_b32 v23, 1, v20"); e("v_and_b32 v24, 1, v20")
    e("v_lshlrev_b32 v31, 4, v1")
    e("s_cmp_lt_u32 s44, 144"); e(f"s_cbranch_scc1 {N}_pG")
    e("s_cmp_lt_u32 s44, 216"); e(f"s_cbranch_scc1 {N}_pD")
    e("s_cmp_ge_u32 s44, 243"); e(f"s_cbranch_scc1 {N}_pWo")
    e("s_lshl_b32 s29, s26, 4"); e("v_bfe_u32 v25, v1, 2, 3"); e("v_add_u32 v25, s29, v25")
    for ch in range(2):
        if ch: e("v_add_u32 v25, 8, v25")
        e("v_mul_u32_u24 v26, 456, v25"); e("v_lshrrev_b32 v26, 16, v26")
        e("v_mul_u32_u24 v27, 144, v26"); e("v_sub_u32 v27, v25, v27")
        e("v_mul_u32_u24 v32, 7282, v27"); e("v_lshrrev_b32 v32, 16, v32")
        e("v_mul_u32_u24 v33, 9, v32"); e("v_sub_u32 v33, v27, v33")
        e("v_cmp_lt_u32 vcc, 4, v33"); e("v_add_u32 v34, 3, v33"); e("v_lshrrev_b32 v36, 3, v32")
        e("v_cndmask_b32 v34, v33, v34, vcc")
        e("v_and_b32 v35, 1, v34"); e("v_lshlrev_b32 v35, 3, v35"); e("v_bfe_u32 v37, v34, 1, 1"); e("v_lshl_add_u32 v35, v37, 2, v35")
        e("v_bfe_u32 v37, v34, 3, 1"); e("v_lshl_add_u32 v35, v37, 4, v35")
        e("v_lshl_add_u32 v36, v26, 1, v36"); e("v_lshl_add_u32 v36, v36, 2, 3")
        e("v_and_b32 v37, 3, v32"); e("v_lshlrev_b32 v37, 3, v37"); e("v_bfe_u32 v38, v32, 2, 1"); e("v_lshl_add_u32 v37, v38, 2, v37")
        e("v_lshl_add_u32 v32, v26, 4, v32"); e("v_mul_u32_u24 v38, 43, v32"); e("v_lshrrev_b32 v38, 7, v38"); e("v_cmp_gt_u32 vcc, 12, v32"); e("v_add_u32 v38, v38, v32")
        e("v_add_u32 v32, 4, v32"); e("v_cndmask_b32 v32, v32, v38, vcc")
        e("v_cmp_eq_u32 vcc, 4, v33"); e("v_lshrrev_b32 v38, 3, v27"); e("v_add_u32 v38, 36, v38")
        e("v_cndmask_b32 v32, v32, v36, vcc"); e("v_cndmask_b32 v35, v35, v37, vcc")
        e("v_cmp_eq_u32 vcc, 2, v26"); e("v_and_b32 v37, 7, v27"); e("v_lshlrev_b32 v37, 2, v37")
        e("v_cndmask_b32 v32, v32, v38, vcc"); e("v_cndmask_b32 v35, v35, v37, vcc")
        e("v_lshrrev_b32 v36, 2, v32"); e("v_mul_u32_u24 v36, 144, v36"); e("v_and_b32 v32, 3, v32"); e("v_cmp_eq_u32 vcc, 3, v32")
        e("v_mov_b32 v37, 0xc00"); e("v_mov_b32 v38, 0x400"); e("v_cndmask_b32 v33, 0, 1, vcc"); e(f"v_cndmask_b32 v{18+ch}, v37, v38, vcc")
        e("v_mul_u32_u24 v33, 105, v33"); e("v_add3_u32 v32, v32, v36, v33")
        e("v_add_u32 v35, v35, v22"); e("v_lshl_add_u32 v35, v23, 5, v35"); e("v_lshlrev_b32 v35, 4, v35")
        e(f"v_lshl_add_u32 v{28+ch}, v32, 10, v35")
    e(f"s_mov_b32 s30, {WS['WQKV'][0]}"); e(f"s_branch {N}_pG2")
    e.label(f"{N}_pG")
    e("s_lshl_b32 s29, s26, 2"); e("v_add_u32 v25, s29, v24")
    e("v_bfe_u32 v35, v1, 2, 1"); e("v_lshlrev_b32 v35, 3, v35"); e("v_bfe_u32 v36, v1, 3, 1"); e("v_lshl_add_u32 v35, v36, 2, v35"); e("v_add_u32 v35, v35, v22")
    e("s_lshl_b32 s29, s27, 4"); e("v_add_u32 v35, s29, v35"); e("v_lshl_add_u32 v35, v23, 5, v35"); e("v_lshlrev_b32 v35, 4, v35")
    e("v_mov_b32 v37, 0x400"); e("v_mov_b32 v38, 0x1000")
    for ch in range(2):
        if ch: e("v_add_u32 v25, 2, v25")
        e("v_mul_u32_u24 v26, 7282, v25"); e("v_lshrrev_b32 v26, 16, v26"); e("v_mul_u32_u24 v27, 9, v26"); e("v_sub_u32 v27, v25, v27")
        e("v_cmp_gt_u32 vcc, 4, v27"); e("v_mul_u32_u24 v32, 36, v27"); e("v_mul_u32_u24 v26, 324, v26")
        e("v_cndmask_b32 v32, v32, v27, vcc"); e(f"v_cndmask_b32 v{18+ch}, v37, v38, vcc"); e("v_add_u32 v32, v32, v26")
        e(f"v_lshl_add_u32 v{28+ch}, v32, 10, v35")
    e(f"s_mov_b32 s30, {WS['WGU'][0]}")
    e.label(f"{N}_pG2")
    e.vi=e.vd=0; e.di=e.dd=0
    e("s_mul_i32 s29, s20, 9")
    for ch in range(2): e(f"v_mul_lo_u32 v32, v{18+ch}, s29"); e(f"v_add_u32 v{28+ch}, v{28+ch}, v32")
    e("v_lshl_add_u32 v26, v23, 3, v21"); e("v_lshlrev_b32 v26, 7, v26"); e("v_lshl_add_u32 v26, v24, 5, v26"); e("v_lshl_add_u32 v26, v22, 3, v26"); e("v_add_u32 v26, s24, v26")
    toks={}
    for s_ in range(9):
        for ch in range(2):
            r=48+8*s_+4*ch; o=s_*2048+64*ch
            e.ds(f"ds_read_b64_tr_b16 v[{r}:{r+1}], v26 offset:{o}"); toks[s_,ch]=e.ds(f"ds_read_b64_tr_b16 v[{r+2}:{r+3}], v26 offset:{o+512}")
    e("v_mov_b32 v40, 0"); e("v_mov_b32 v41, 0")
    e("v_and_b32 v27, 31, v1"); e("v_lshlrev_b32 v27, 3, v27"); e(f"v_add_u32 v27, {LDSW+256}, v27"); e("s_lshl_b32 s29, s20, 8"); e("v_add_u32 v32, s29, v27")
    for s_ in range(9):
        for ch in range(2):
            e.wait(ds=toks[s_,ch])
            for r in range(4): e(f"v_dot2c_f32_bf16 v{40+ch}, s21, v{48+8*s_+4*ch+r}")
    e.nop(3)
    e("v_mov_b32 v42, v40"); e("v_mov_b32 v43, v41"); e.nop(2)
    e("v_permlane32_swap_b32 v42, v40"); e("v_permlane32_swap_b32 v43, v41"); e("v_add_f32 v40, v40, v42"); e("v_add_f32 v41, v41, v43")
    e.ds("ds_write_b64 v32, v[40:41]"); e.lgkm0(); e("s_barrier")
    for w in range(4): t=e.ds(f"ds_read_b64 v[{32+2*w}:{33+2*w}], v27 offset:{256*w}")
    e("s_mov_b32 s35, 0x00003f80"); e("s_mov_b32 s36, 0x3f800000")
    e.wait(ds=t)
    for ch in range(2):
        e(f"v_add_f32 v{32+ch}, v{32+ch}, v{34+ch}"); e(f"v_add_f32 v{36+ch}, v{36+ch}, v{38+ch}"); e(f"v_add_f32 v{32+ch}, v{32+ch}, v{36+ch}")
        e(f"v_mul_f32 v{40+ch}, {fl(-1.0/D)}, v{32+ch}")
    for s_ in range(9):
        for ch in range(2):
            x=48+8*s_+4*ch
            for r in range(4):
                e(f"v_dot2_f32_bf16 v{32+2*r}, v{x+r}, s35, v{40+ch}"); e(f"v_dot2_f32_bf16 v{33+2*r}, v{x+r}, s36, v{40+ch}")
            for r in range(4): e(f"v_cvt_pk_bf16_f32 v{x+r}, v{32+2*r}, v{33+2*r}")
            e(f"buffer_store_dwordx4 v[{x}:{x+3}], v{28+ch}, s[12:15], s30 offen sc1"); e(f"v_add_u32 v{28+ch}, v{28+ch}, v{18+ch}")
    e(f"s_branch {N}_end")
    def rd_st(lst,rowb):
        e.vi=e.vd=0; e.di=e.dd=0; toks=[]
        for n,(b,o,_) in enumerate(lst):
            e.ds(f"ds_read_b64_tr_b16 v[{48+4*n}:{49+4*n}], v{b} offset:{o}")
            toks.append(e.ds(f"ds_read_b64_tr_b16 v[{50+4*n}:{51+4*n}], v{b} offset:{o+4*rowb}"))
        for n,(b,o,d) in enumerate(lst):
            if isinstance(d,tuple): e(f"s_add_u32 s33, s{d[0]}, {d[1]}")
            else: e(f"s_add_u32 s33, s30, {d}")
            e.wait(ds=toks[n])
            e(f"buffer_store_dwordx4 v[{48+4*n}:{51+4*n}], v31, s[12:15], s33 offen sc1")
    e.label(f"{N}_pWo")
    e("v_lshl_add_u32 v26, v23, 3, v21"); e("v_mul_u32_u24 v26, 1152, v26"); e("v_add_u32 v26, s24, v26")
    e("v_and_b32 v27, 1, v22"); e("v_lshl_add_u32 v26, v27, 4, v26"); e("v_lshrrev_b32 v27, 1, v22"); e("v_lshl_add_u32 v26, v27, 3, v26"); e("v_lshl_add_u32 v28, v24, 5, v26")
    e("s_lshl_b32 s29, s26, 2"); e("s_add_u32 s29, s29, s20"); e("s_mul_i32 s30, s29, 3072"); e(f"s_add_u32 s30, s30, {WS['WO'][0]}")
    rd_st([(28,64*B,((B//3)*108+B%3)*1024) for B in range(18)],1152); e(f"s_branch {N}_end")
    e.label(f"{N}_pD")
    e("v_lshl_add_u32 v26, v20, 3, v21"); e("v_mul_u32_u24 v26, 576, v26"); e("v_add_u32 v26, s24, v26")
    e("v_lshl_add_u32 v28, v22, 4, v26"); e("v_lshl_add_u32 v29, v22, 3, v26")
    e("s_lshr_b32 s29, s20, 1"); e("s_and_b32 s34, s20, 1")
    e("s_lshl_b32 s33, s26, 1"); e("s_add_u32 s29, s29, s33")
    e("s_mul_i32 s33, s29, 1821"); e("s_lshr_b32 s33, s33, 16")
    e("s_mul_i32 s35, s33, 36"); e("s_sub_u32 s29, s29, s35")
    e("s_lshl_b32 s34, s34, 3"); e("s_add_u32 s34, s33, s34"); e(f"s_mul_i32 s34, s34, {324*1024}"); e(f"s_add_u32 s34, s34, {WS['WD'][0]}")
    t0=sum(KORD.index(r)<<(5*r) for r in range(9)); t1=sum((KORD.index(9+r)-KORD.index(r))<<(3*r) for r in range(9))
    e("s_mul_i32 s60, s29, 7282"); e("s_lshr_b32 s60, s60, 16"); e("s_mul_i32 s61, s60, 9"); e("s_sub_u32 s61, s29, s61")
    e("s_mul_i32 s30, s61, 3"); e(f"s_lshr_b32 s30, {t1}, s30"); e("s_and_b32 s30, s30, 7"); e("s_mul_i32 s30, s30, s60")
    e(f"s_mov_b32 s62, {t0&0xffffffff}"); e(f"s_mov_b32 s63, {t0>>32}"); e("s_mul_i32 s61, s61, 5"); e("s_lshr_b64 s[62:63], s[62:63], s61"); e("s_and_b32 s62, s62, 31"); e("s_add_u32 s30, s30, s62")
    e("s_mul_i32 s30, s30, 5120"); e("s_add_u32 s30, s30, s34"); e("s_lshl_b32 s35, s29, 11"); e("s_add_u32 s35, s35, s34"); e(f"s_add_u32 s35, s35, {36*1024}")
    for p in range(4):
        e(f"s_sub_u32 s{56+p}, {p+3}, s33"); e(f"s_and_b32 s{56+p}, s{56+p}, 3"); e(f"s_mul_i32 s60, s{56+p}, {72*1024}"); e("s_add_u32 s60, s60, s35")
        e(f"s_lshl_b32 s61, s{56+p}, 11"); e(f"s_add_u32 s61, s61, s30"); e(f"s_cmp_ge_u32 s{56+p}, 2"); e(f"s_cselect_b32 s{56+p}, s60, s61")
    lst=[]
    for n2 in range(2):
        for j in range(9):
            if j<8: lst.append((28,(144*n2+32*(j>>1)+4*(j&1))*2,(56+(j>>1),(n2*4*324+(j&1))*1024)))
            else: lst.append((29,(144*n2+128)*2,(n2*4*324+4)*1024))
    rd_st(lst,576)
    e.label(f"{N}_end"); e.stamp(2)
    mod.add(N,e,vg=120,sg=64)
    return (N,256,256,LDSW+256+1024)
```

```python
from fw import *
from lay import *
from k1 import prologue_common
import os, math
C1=-2*math.sqrt(2/math.pi)*math.log2(math.e); C2=C1*0.044715
P1=4
def env(n,d): return int(os.environ.get(n,d))
import k5
def k4(mod,N,XI,merged=False):
    if merged:
        eb=E(); eb("s_cmp_ge_u32 s2, 256"); eb("s_cbranch_scc1 ffnb_kernel_end"); eb("s_mov_b32 s49, 1"); eb("s_branch ffn_common"); eb.label("ffnb_kernel_end")
        mod.add('ffnb_kernel',eb,vg=256,ag=256,sg=64)
    e=E()
    prologue_common(e,N,256)
    if merged:
        e.L[2:2]=["  s_mov_b32 s49, 0","ffn_common:"]; e.smap={4:0,10:1,11:2,8:3}
    XV=14; ACC=46; NSET=5; WF=208; NWF=5; TMP=228; OUT=236; CON=244; EXT=252
    LA=env('K4LA',4); RING=144; BUD=env('K4BUD',24); LEAD=env('K4LEAD',26); LDC=env('K4LDC',8); SCH=env('K4SCH',36); PRO=env('K4PRO',12)
    LEAD2=env('K4LEAD2',72); SPR=env('K4SPR',0)
    MB=env('K4MB',2)
    e(f"s_and_b32 s18, s16, {(8>>MB)-1}"); e(f"s_lshl_b32 s18, s18, {MB}"); e(f"s_and_b32 s19, s17, {(1<<MB)-1}"); e("s_add_u32 s18, s18, s19")
    e(f"s_lshr_b32 s19, s16, {3-MB}"); e(f"s_lshl_b32 s19, s19, {5-MB}"); e(f"s_lshr_b32 s17, s17, {MB}"); e("s_add_u32 s19, s19, s17")
    e("s_lshl_b32 s18, s18, 3"); e("s_lshl_b32 s21, s20, 1"); e("s_add_u32 s18, s18, s21")
    e("s_mul_i32 s21, s18, 36864"); e(f"s_add_u32 s21, s21, {WS[XI][0]}"); e("s_add_u32 s22, s21, 36864")
    e(f"s_mul_i32 s23, s19, {324*1024}"); e(f"s_add_u32 s23, s23, {WS['WGU'][0]}")
    e("s_lshl_b32 s30, s20, 10"); e("s_lshl_b32 s31, s20, 11"); e("s_lshl_b32 s32, s20, 12"); e(f"s_mul_i32 s33, s20, {SCH//4*1024}")
    e.lgkm0()
    srd_ptr(e,8,4,WSSIZE)
    def xreg(ks,t):
        f=2*ks+t
        return f"a[{4*f}:{4*f+3}]" if f<64 else f"v[{XV+4*(f-64)}:{XV+4*(f-64)+3}]"
    NP1=36*P1
    sizes=[4,4,8]+[16]*8+[SCH]*((324-NP1)//SCH); start=[sum(sizes[:i]) for i in range(len(sizes)+1)]; assert start[-1]==324
    tokW={}; tokX={}; stt={}; items=[]; lastd=-99
    for c,sz in enumerate(sizes):
        per=sz//4; sr={1:30,2:31,4:32,SCH//4:33}[per]
        need=start[c+1]-RING; cb=0
        while need>0 and start[max(cb-1,0)]<need: cb+=1
        for i in range(per):
            def f(c=c,i=i,sr=sr):
                if i%4==0:
                    e(f"s_add_u32 m0, s{sr}, {((start[c]%RING)+i)*1024}"); e(f"s_add_u32 s24, s{sr}, {(start[c]+i)*1024}"); e("s_add_u32 s24, s24, s23")
                tokW[c]=e.vm(f"buffer_load_dwordx4 v3, s[8:11], s24 offen offset:{1024*(i%4)} lds")
            lastd=max(lastd+0.01,start[c]-LA-1-(per-1-i)*4*SPR); items.append((lastd,cb,f))
    for ks in range(36):
        for t in range(2):
            def f(ks=ks,t=t):
                tokX[ks]=e.vm(f"buffer_load_dwordx4 {xreg(ks,t)}, v3, s[8:11], s{21+t} offen offset:{1024*(ks%4)}")
                if ks%4==3: e(f"s_add_u32 s{21+t}, s{21+t}, 4096")
            items.append((P1*ks+t*0.01,0,f))
    def sreg(i,t):
        k=2*i+t
        return ACC+32*P1+2*k if k<16 else EXT+2*(k-16)
    STN=env('K4STN',122)
    for i in range(9):
        for t in range(2):
            def f(i=i,t=t):
                r=sreg(i,t); stt[t]=e.vm(f"buffer_load_dwordx2 v[{r}:{r+1}], v5, s[8:11], s25 offen offset:{256*t}")
                if t==1: e("s_add_u32 s25, s25, 16384")
            items.append((STN-(9-i)*5+t*0.01,0,f))
    def sent(i):
        def f():
            if i==0:
                for r in range(4): e(f"v_mov_b32 v{EXT+r}, -1")
                e("s_mul_i32 s34, s2, 28672"); e("s_mul_i32 s35, s20, 7168"); e("s_add_u32 s34, s34, s35"); e(f"s_add_u32 s34, s34, {WS['P'][0]}")
            if i==4: e("s_add_u32 s34, s34, 4096")
            e.vm(f"buffer_store_dwordx4 v[{EXT}:{EXT+3}], v3, s[8:11], s34 offen offset:{1024*(i%4)} sc1")
        return f
    if not merged:
        for i in range(7): items.append((230+3*i,0,sent(i)))
    def cpf():
        e("s_lshr_b32 s59, s2, 3"); e("s_lshl_b32 s59, s59, 2"); e("s_add_u32 s59, s59, s20"); code_prefetch(e,'down_part' if merged else 'downb_kernel',59,EXT,N)
    items.append((env('K4CPF',300),0,cpf))
    def wpf(i):
        def f():
            if i==0:
                e("s_lshr_b32 s58, s2, 3"); e("s_lshl_b32 s58, s58, 2"); e("s_add_u32 s58, s58, s20")
                e("s_and_b32 s57, s58, 3"); e("s_lshl_b32 s57, s57, 2"); e("s_lshr_b32 s56, s16, 1"); e("s_add_u32 s57, s57, s56"); e(f"s_mul_i32 s57, s57, {324*1024}")
                e("s_lshr_b32 s58, s58, 2"); e("s_mul_i32 s58, s58, 10368"); e("s_add_u32 s57, s57, s58"); e(f"s_add_u32 s57, s57, {WS['WD'][0]}"); e("v_lshlrev_b32 v13, 7, v1")
            else: e("s_add_u32 s57, s57, 2176")
            e.vm("buffer_load_dword v12, v13, s[8:11], s57 offen")
        return f
    tok5={}; tokf=[0]; FA=10
    if merged:
        def grp(lst):
            def f():
                for o in lst: e(o)
            return f
        items.append((200,0,grp(k5.k5_roles()))); items.append((204,0,grp(k5.k5_wsetup()+k5.k5_hsetup())))
        def sent2(i):
            def f():
                if i==0:
                    for r in range(4): e(f"v_mov_b32 v{EXT+r}, -1")
                    e("s_mul_i32 s34, s45, 6144"); e("s_add_u32 s34, s34, s55")
                if i==4: e("s_add_u32 s34, s34, 4096")
                if i==6: e("s_add_u32 s34, s55, 24576"); e("s_cmp_eq_u32 s45, s20"); e(f"s_cselect_b32 s34, s34, {WSSIZE}")
                e.vm(f"buffer_store_dwordx4 v[{EXT}:{EXT+3}], v3, s[8:11], s34 offen offset:{1024*(i%4 if i<6 else i-6)} sc1")
            return f
        for i in range(9): items.append((210+4*i,0,sent2(i)))
        items.append((300,0,grp(k5.k5_flagaddr(FA,FA+1))))
        d=env('K4W5',330); NPW=env('K4NPW',7)
        for c in range(NPW):
            for i in range(k5.SIZES[c]//4): items.append((d,15,lambda c=c,i=i: k5.k5_wload(e,tok5,c,i))); d+=0.1
        hq=[(ks,0) for ks in KORD[:16] if ks<32][:env('K4NH',14)]; hpre=list(hq)
    if env('K4WPF',1) and not merged:
        for i in range(2): items.append((env('K4WPD',290)+4*i,0,wpf(i)))
    items.sort(key=lambda x:x[0])
    e("v_and_b32 v6, 31, v1"); e("v_lshrrev_b32 v7, 5, v1")
    while items and items[0][0]<PRO: items.pop(0)[2]()
    e("v_add_u32 v4, 0x10000, v3"); e("v_add_u32 v9, 0x20000, v3")
    e("v_mul_u32_u24 v5, 147456, v7"); e("v_lshl_add_u32 v5, v6, 3, v5")
    e("s_lshl_b32 s25, s18, 8"); e(f"s_add_u32 s25, s25, {WS['ST'][0]}")
    e("v_lshrrev_b32 v8, 4, v6"); e("v_mul_u32_u24 v8, 147456, v8"); e("v_and_b32 v6, 15, v6"); e("v_lshl_add_u32 v8, v6, 4, v8"); e("v_lshl_add_u32 v8, v7, 8, v8")
    e("s_mul_i32 s26, s18, 294912"); e("s_mul_i32 s27, s19, 4608"); e("s_add_u32 s26, s26, s27"); e(f"s_add_u32 s26, s26, {WS['H'][0]}"); e("s_add_u32 s27, s26, 294912")
    e("s_add_u32 s28, s26, 4096"); e("s_add_u32 s29, s27, 4096")
    def V(s,c=4): return (c,lambda: e(s))
    def stats_ops():
        ops=[]
        for t in range(2):
            a=sreg(0,t); c1,c2,vv=CON+3*t,CON+3*t+1,CON+3*t+2
            ops.append((4,lambda t=t: e.wait(vm=stt[t])))
            for i in range(1,9):
                ops+=[V(f"v_add_f32 v{a}, v{a}, v{sreg(i,t)}"),V(f"v_add_f32 v{a+1}, v{a+1}, v{sreg(i,t)+1}")]
            ops+=[V(f"v_mov_b32 v{TMP}, v{a}"),V(f"v_mov_b32 v{TMP+1}, v{a+1}"),V("s_nop 1",8)]
            ops+=[V(f"v_permlane32_swap_b32 v{TMP}, v{a}"),V(f"v_permlane32_swap_b32 v{TMP+1}, v{a+1}")]
            ops+=[V(f"v_add_f32 v{a}, v{a}, v{TMP}"),V(f"v_add_f32 v{a+1}, v{a+1}, v{TMP+1}")]
            ops+=[V(f"v_mul_f32 v{a}, {fl(1.0/D)}, v{a}"),V(f"v_mul_f32 v{a+1}, {fl(1.0/D)}, v{a+1}"),V(f"v_fma_f32 v{a+1}, -v{a}, v{a}, v{a+1}")]
            ops+=[V(f"v_max_f32 v{a+1}, 0, v{a+1}"),V(f"v_add_f32 v{vv}, {fl(1e-5)}, v{a+1}"),V(f"v_rsq_f32 v{a}, v{vv}",8),V("s_nop 0")]
            ops+=[V(f"v_mul_f32 v{c1}, {fl(C1)}, v{a}"),V(f"v_mul_f32 v{a+1}, v{a}, v{a}"),V(f"v_mul_f32 v{a+1}, v{a+1}, v{a}"),V(f"v_mul_f32 v{c2}, {fl(C2)}, v{a+1}")]
        return ops
    ecount=[0]; hst={}
    def publish(val,fs):
        return [lambda: e(f"v_mov_b32 v12, {val}"), lambda: e.wait(vm=hst[fs]), lambda: e.vm("buffer_store_dword v12, v13, s[8:11], s35 offen sc1")]
    def pubsetup():
        for o in ["s_lshr_b32 s35, s18, 3","s_lshl_b32 s35, s35, 5","s_add_u32 s35, s35, s19","s_lshl_b32 s35, s35, 2","s_add_u32 s35, s35, s20","s_lshl_b32 s35, s35, 6",
                  "s_lshl_b32 s24, s49, 16","s_add_u32 s35, s35, s24",f"s_add_u32 s35, s35, {WS['FL'][0]}","v_min_u32 v13, 1, v1","v_lshlrev_b32 v13, 31, v13"]: e(o)
    def epi_ops(fs,ts=(0,1)):
        ops=[]
        for t in ts:
            A=ACC+32*(fs%NSET)+16*t; c1,c2,vv=CON+3*t,CON+3*t+1,CON+3*t+2
            O=OUT+4*(ecount[0]%2); ecount[0]+=1
            for hf in range(2):
                T=TMP+4*hf; g=A+4*hf; u=A+8+4*hf
                ops+=[V(f"v_mul_f32 v{T+i}, v{g+i}, v{g+i}") for i in range(4)]
                ops+=[V(f"v_fma_f32 v{T+i}, v{T+i}, v{c2}, v{c1}") for i in range(4)]
                ops+=[V(f"v_mul_f32 v{T+i}, v{T+i}, v{g+i}") for i in range(4)]
                for i in range(4): ops+=[V(f"v_exp_f32 v{T+i}, v{T+i}",8),V(f"v_mul_f32 v{u+i}, v{u+i}, v{g+i}")]
                ops+=[V(f"v_fma_f32 v{T+i}, v{T+i}, v{vv}, v{vv}") for i in range(4)]
                ops+=[V(f"v_rcp_f32 v{T+i}, v{T+i}",8) for i in range(4)]
                ops+=[V(f"v_mul_f32 v{u+i}, v{u+i}, v{T+i}") for i in range(4)]
                ops+=[V(f"v_cvt_pk_bf16_f32 v{O+2*hf+i}, v{u+2*i}, v{u+2*i+1}") for i in range(2)]
            so,off=(26+t,512*fs) if fs<8 else (28+t,0)
            def st_(O=O,so=so,off=off,fs=fs): hst[fs]=e.vm(f"buffer_store_dwordx4 v[{O}:{O+3}], v8, s[8:11], s{so} offen offset:{off} sc1")
            ops.append((4,st_))
        return ops
    seq=[(P1*ks+fs,ks,fs,(0,1)) for ks in range(36) for fs in range(P1)]+[(36*fs+ks,ks,fs,(0,1)) for fs in range(P1,8) for ks in range(36)]
    SPLIT=env('K4SPLIT',1)
    if SPLIT:
        seq+=[(288+ks,ks,8,(0,)) for ks in range(36)]+[(288+ks,ks,8,(1,)) for ks in range(36)]
    else: seq+=[(288+ks,ks,8,(0,1)) for ks in range(36)]
    rt={}
    def rd(n):
        a=(seq[n][0]%RING)*1024; b=WF+4*(n%NWF)
        rt[n]=e.ds(f"ds_read_b128 v[{b}:{b+3}], v{[3,4,9][a>>16]} offset:{a&0xffff}")
    e.stamp(0); e.wait(vm=tokW[0]); e("s_barrier"); e.stamp(1)
    cbar=0; fq=[]
    def can(it): return it[1]<=cbar
    def bar(c,n):
        nonlocal cbar
        while any(it[0]<=start[c]-LA for it in items): assert can(items[0]); items.pop(0)[2]()
        e.wait(vm=tokW[c]); e("s_barrier"); cbar=c
    for n in range(LA): rd(n)
    NS_=len(seq); gap=0
    for n,(pos,ks,fs,ts) in enumerate(seq):
        m=n+LA; used=0
        if m<324 and m in start:
            c=start.index(m); bar(c,n); used+=8
            st={5:2,8:3,11:4,12:5,13:6,15:7}.get(c) if SCH==36 else None
            if st: e.stamp(st)
        if n<NP1 and fs==0:
            while any(it[0]<=P1*ks+0.5 for it in items): assert can(items[0]); items.pop(0)[2]()
        if n==STN: fq.extend((None,o) for o in stats_ops())
        if n==NP1: assert not fq, 'stats late'
        if n>=NP1 and ks==0 and 0 in ts: assert not any(tag==fs-NSET for tag,_ in fq), f"epilogue of {fs-NSET} late"
        if n>=NP1 and ks==4:
            if fs==P1:
                for k in range(P1): fq.extend((k,o) for o in epi_ops(k))
            elif 0 in ts: fq.extend((fs-1,o) for o in epi_ops(fs-1))
            else: fq.extend((8,o) for o in epi_ops(8,(0,)))
        if merged and n==env('K4P1',270):
            assert 4 in hst and not any(tag==4 for tag,_ in fq); pubsetup()
            for f in publish(1,4): f()
        if merged and n==env('K4P1B',350):
            assert 6 in hst and not any(tag==6 for tag,_ in fq)
            for f in publish(2,6): f()
        if merged and n==env('K4FL',310): tokf[0]=e.vm(f"buffer_load_dword v{FA+1}, v{FA}, s[8:11], s54 offen sc1")
        if merged and n==324: e.stamp(10); k5.poll_check(e,N,'f1',tokf[0],FA,FA+1,1); e.stamp(11)
        if merged and n>324 and n%2==1 and hq:
            ks_,t_=hq.pop(0); e(f"s_add_u32 s42, s41, {1024*ks_}"); e.vm(f"buffer_load_dwordx4 {k5.hreg_m(ks_,t_)}, v3, s[8:11], s42 offen sc1"); used+=8
        b=WF+4*(n%NWF)
        for t in ts:
            first = t==ts[0]
            if first and e.wait(vm=tokX[ks] if (n<NP1 and fs==0) else None, ds=rt[n]): used+=4
            d=f"v[{ACC+32*(fs%NSET)+16*t}:{ACC+32*(fs%NSET)+16*t+15}]"
            e(f"v_mfma_f32_32x32x16_bf16 {d}, v[{b}:{b+3}], {xreg(ks,t)}, {d if ks else 0}")
            if first and m<NS_: rd(m); used+=4
            if t==ts[-1] and (len(ts)==2 or n%2==0) and items and items[0][0]<n+(LEAD if n<NP1-LEAD else LEAD2) and can(items[0]): items.pop(0)[2](); used+=LDC
            while fq and used+fq[0][1][0]<=(BUD if n<env('K4B2N',999) else env('K4BUD2',24)): c_,f=fq.pop(0)[1]; f(); used+=c_
            used=0
    e.stamp(8)
    print("K4 leftover filler cycles:",sum(o[0] for _,o in fq),file=__import__('sys').stderr)
    if merged:
        assert not items and not hq
        fill=[f for _,(c_,f) in fq]+[f for c_,f in epi_ops(8,(1,))]+[lambda: None]*env('K4P2',30)+publish(3,8)
        e.label("down_part"); e.smap={1:4,14:5,15:6,16:7,17:8,4:9,6:10,8:11}
        k5.k5_body(e,N,tok5,NPW,True,fill,FA,hpre)
    else:
        for _,(c_,f) in fq: f()
        e.nop(12)
        for c_,f in epi_ops(8,(1,) if SPLIT else (0,1)): f()
        e.stamp(9)
    e.label(f"{N}_end")
    mod.add(N,e,vg=256,ag=256,sg=64)
    return ((N,256,256,RING*1024),('ffnb_kernel',256,256,RING*1024)) if merged else (N,256,256,RING*1024)
```

```python
from fw import *
from lay import *
from k1 import prologue_common
import os
def env(n,d): return int(os.environ.get(n,d))
OFF=40
def k5_wsetup():
    return ["s_bfe_u32 s36, s2, 0x20001","s_lshr_b32 s37, s2, 6","s_lshl_b32 s37, s37, 2","s_add_u32 s36, s36, s37",f"s_mul_i32 s36, s36, {324*1024}",f"s_add_u32 s36, s36, {WS['WD'][0]}",
            "s_lshl_b32 s37, s20, 10","s_lshl_b32 s38, s20, 11","s_mul_i32 s39, s20, 5120"]
SIZES=[4,8,8]+[20]*15+[4]; START=[sum(SIZES[:i]) for i in range(len(SIZES)+1)]; RING=140
def k5_wload(e,tokW,c,i):
    sr={1:37,2:38,5:39}[SIZES[c]//4]
    if i%4==0:
        e(f"s_add_u32 m0, s{sr}, {(((START[c]+OFF)%RING)+i)*1024}"); e(f"s_add_u32 s40, s{sr}, {(START[c]+i)*1024}"); e("s_add_u32 s40, s40, s36")
    tokW[c]=e.vm(f"buffer_load_dwordx4 v3, s[8:11], s40 offen offset:{1024*(i%4)} lds")
def k5_roles():
    return ["s_bfe_u32 s45, s2, 0x20001","s_and_b32 s46, s2, 1","s_lshl_b32 s46, s46, 3","s_bfe_u32 s44, s2, 0x30003","s_add_u32 s46, s46, s44","s_lshr_b32 s44, s2, 6",
            "s_lshl_b32 s46, s46, 2","s_add_u32 s46, s46, s20",
            "s_lshr_b32 s55, s46, 2","s_lshl_b32 s55, s55, 2","s_add_u32 s55, s55, s44","s_lshl_b32 s55, s55, 2","s_add_u32 s55, s55, s20","s_mul_i32 s55, s55, 28672",f"s_add_u32 s55, s55, {WS['P'][0]}"]
def k5_flagaddr(va,vt):
    return ["s_lshr_b32 s54, s46, 3","s_lshl_b32 s54, s54, 5","s_lshl_b32 s53, s45, 3","s_add_u32 s54, s54, s53","s_lshl_b32 s54, s54, 2","s_bfe_u32 s53, s46, 0x20001","s_add_u32 s54, s54, s53",
            f"v_and_b32 v{va}, 7, v1",f"v_lshl_add_u32 v{va}, v{va}, 2, s54",
            "s_and_b32 s54, s2, 1","s_lshl_b32 s54, s54, 2","s_bfe_u32 s53, s2, 0x20003","s_add_u32 s54, s54, s53","s_lshl_b32 s54, s54, 5","s_lshr_b32 s53, s2, 5","s_add_u32 s54, s54, s53",
            "s_lshl_b32 s54, s54, 2","s_add_u32 s54, s54, s20",f"v_and_b32 v{vt}, 3, v1",f"v_lshl_add_u32 v{vt}, v{vt}, 5, s54","v_cmp_gt_u32 vcc, 8, v1",
            "s_lshl_b32 s54, s49, 16",f"s_add_u32 s54, s54, {WS['FL'][0]}",f"v_cndmask_b32 v{va}, v{vt}, v{va}, vcc",f"v_lshlrev_b32 v{va}, 6, v{va}"]
def poll_check(e,N,tag,tok,va,vd,mask):
    e.wait(vm=tok); e("s_mov_b32 s53, 0"); e(f"s_branch {N}_{tag}c")
    e.label(f"{N}_{tag}p")
    e(f"buffer_load_dword v{vd}, v{va}, s[8:11], s54 offen sc1"); e("s_add_u32 s53, s53, 1"); e("s_waitcnt vmcnt(0)")
    e.label(f"{N}_{tag}c")
    e(f"v_cmp_gt_u32 vcc, {mask}, v{vd}"); e("s_cmp_gt_u32 s53, 0x8000"); e(f"s_cbranch_scc1 {N}_{tag}g"); e(f"s_cbranch_vccnz {N}_{tag}p")
    e.label(f"{N}_{tag}g")
def hreg_m(ks,t,HV=110):
    f=2*ks+t
    return f"a[{4*f}:{4*f+3}]" if f<64 else f"v[{HV+4*(f-64)}:{HV+4*(f-64)+3}]"
def k5_hsetup():
    return ["s_mul_i32 s41, s46, 294912","s_mul_i32 s42, s45, 36864","s_add_u32 s41, s41, s42",f"s_add_u32 s41, s41, {WS['H'][0]}"]
def k5_body(e,N,tokW,npre,merged,fill=None,FA=None,hpre=()):
    ACC=24; NWF=8
    WF,HV,OUT,RES,IN=(174,110,142,158,206) if merged else (96,128,160,176,188)
    fill=list(fill or [])
    LA=env('K5LA',5); LEAD=env('K5LEAD',24); SPR=env('K5SPR',1); PRO=env('K5PRO',16); PF=env('K5PF',30); LEAD2=env('K5LEAD2',10); LEAD3=env('K5LEAD3',100); RD=env('K5RD',300); LDP2=env('K5LDP2',2); SD=env('K5SD',2); SMIX=env('K5SMIX',0); SR=env('K5SR',2)
    HS=' sc1' if merged and env('K5HSC',1) else ''
    if not merged:
        for o in k5_roles()+k5_wsetup(): e(o)
    e("s_mov_b32 s17, s44"); e("s_mov_b32 s18, s45"); e("s_mov_b32 s19, s46"); e("s_mov_b32 s34, s55")
    if not merged:
        for o in k5_hsetup(): e(o)
    e("s_mov_b32 s21, s41"); e("v_add_u32 v2, 147456, v3")
    if not merged: e.lgkm0(); srd_ptr(e,8,4,WSSIZE)
    def hreg(ks,t):
        f=2*ks+t
        return f"a[{4*f}:{4*f+3}]" if f<64 else f"v[{HV+4*(f-64)}:{HV+4*(f-64)+3}]"
    sizes=SIZES; start=START
    tokH={}; items=[]; lastd=-99
    for c,sz in enumerate(sizes):
        per=sz//4
        need=start[c+1]-RING; cb=0
        while need>0 and start[max(cb-1,0)]<need: cb+=1
        for i in range(per):
            lastd=max(lastd+0.01,start[c]-LA-1-(per-1-i)*4*SPR-(env('K5WL',76) if merged and c<env('K5WC',11) else 0))
            while cb>0 and lastd<start[cb]-LA+LEAD: lastd+=1
            if c>=npre: items.append((lastd,cb,lambda c=c,i=i: k5_wload(e,tokW,c,i)))
    for r,ks in enumerate(KORD):
        for t in range(2):
            if (ks,t) in hpre: continue
            def f(ks=ks,t=t):
                if t==0 or (ks,0) in hpre: e(f"s_add_u32 s22, s21, {1024*ks}")
                tokH[ks]=e.vm(f"buffer_load_dwordx4 {hreg(ks,t)}, v{3-t}, s[8:11], s22 offen{HS}")
            items.append((5*r+t*0.01,0,f))
    if merged:
        tf=[0]
        def pl(): tf[0]=e.vm(f"buffer_load_dword v{FA+1}, v{FA}, s[8:11], s54 offen sc1")
        for lv,at in ((2,80),(3,120)):
            items.append((at-env('K5F2',14),0,pl)); items.append((at-0.5,0,lambda lv=lv: (e.stamp(10+2*lv),poll_check(e,N,f'f{lv}',tf[0],FA,FA+1,lv),e.stamp(11+2*lv))))
    def res(i):
        def f():
            if i<2: e.vm(f"buffer_load_dwordx4 v[{RES+4*i}:{RES+4*i+3}], v6, s[8:11], s32 offen offset:{256*i}")
            else: e.vm(f"buffer_load_dwordx2 v[{RES+8+2*(i-2)}:{RES+9+2*(i-2)}], v7, s[8:11], s25 offen offset:{256*(i-2)}")
        return f
    for i in range(4): items.append((RD+i*0.01,0,res(i)))
    items.sort(key=lambda x:x[0])
    def can(it): return it[1]<=cbar
    while items and items[0][0]<PRO: items.pop(0)[2]()
    e("v_add_u32 v4, 0x10000, v3"); e("v_add_u32 v5, 0x20000, v3")
    e("v_and_b32 v14, 15, v1"); e("v_lshrrev_b32 v15, 4, v1"); e("v_lshlrev_b32 v6, 4, v14"); e("v_lshl_add_u32 v6, v15, 9, v6")
    e("v_lshrrev_b32 v18, 5, v1"); e("v_lshlrev_b32 v7, 4, v14"); e("v_lshl_add_u32 v7, v18, 9, v7"); e("v_and_b32 v19, 1, v15"); e("v_lshl_add_u32 v7, v19, 3, v7")
    e("s_mul_i32 s23, s19, 36864"); e("s_mul_i32 s24, s17, 9216"); e("s_add_u32 s23, s23, s24")
    e(f"s_add_u32 s25, s23, {WS['X1'][0]+8192}"); e("s_lshl_b32 s24, s18, 11"); e("s_add_u32 s24, s24, s23"); e(f"s_add_u32 s32, s24, {WS['X1'][0]}")
    seq=[(ks,j) for ks in KORD for j in (0,1,2,3,8)]+[(ks,j) for ks in range(36) for j in (4,5)]+[(ks,j) for ks in range(36) for j in (6,7)]
    NA=180; NB=252; zero=set(range(5))|{NA,NA+1,NB,NB+1}
    rt={}
    def rd(n):
        a=((n+OFF)%RING)*1024; b=WF+4*(n%NWF)
        rt[n]=e.ds(f"ds_read_b128 v[{b}:{b+3}], v{3+(a>>16)} offset:{a&0xffff}")
    def V(s): return lambda: e(s)
    def VM(s): return lambda: e.vm(s)
    send=[V("s_nop 3")]
    send1=send; send2=[]
    for q in range(3):
        send=send1 if q<2 else send2
        send+=[V(f"s_add_u32 s35, s18, {q+1}"),V("s_and_b32 s35, s35, 3"),V("s_mul_i32 s35, s35, 6144"),V("s_add_u32 s35, s35, s34")]
        if q==2: send+=[V("s_add_u32 s35, s35, 4096")]
        for t in range(2):
            O=OUT+8*(q&1)+4*t; a=ACC+16*q+4*t; b=a+8
            send+=[V(f"v_cvt_pk_bf16_f32 v{O}, v{a}, v{a+1}"),V(f"v_cvt_pk_bf16_f32 v{O+1}, v{a+2}, v{a+3}"),
                   V(f"v_cvt_pk_bf16_f32 v{O+2}, v{b}, v{b+1}"),V(f"v_cvt_pk_bf16_f32 v{O+3}, v{b+2}, v{b+3}"),
                   VM(f"buffer_store_dwordx4 v[{O}:{O+3}], v3, s[8:11], s35 offen offset:{1024*t+2048*(q&1)} sc1")]
    a=ACC+64; O=OUT; OWN=ACC+48; send=send1
    send+=[V("s_sub_u32 s35, s20, s18"),V("s_add_u32 s35, s35, 3"),V("s_and_b32 s35, s35, 3"),V("s_lshl_b32 s35, s35, 10"),V("s_add_u32 s35, s35, s34"),V("s_add_u32 s35, s35, 24576")]
    send+=[V(f"v_cvt_pk_bf16_f32 v{O+r}, v{a+2*r}, v{a+2*r+1}") for r in range(4)]
    send+=[VM(f"buffer_store_dwordx4 v[{O}:{O+3}], v3, s[8:11], s35 offen sc1")]
    send+=[V("s_mul_i32 s41, s18, 6144"),V("s_add_u32 s41, s41, s34"),V("s_add_u32 s42, s41, 4096"),V("s_add_u32 s43, s34, 24576"),
           V("s_cmp_eq_u32 s18, s20"),V(f"s_cselect_b32 s43, s43, {WSSIZE}")]
    recv=[f"buffer_load_dwordx4 v[{IN+4*i}:{IN+4*i+3}], v3, s[8:11], s{41+(i>>2)} offen offset:{1024*(i&3)} sc1" for i in range(6)]
    recv+=[f"buffer_load_dwordx4 v[{IN+24+4*q}:{IN+27+4*q}], v3, s[8:11], s43 offen offset:{1024*q} sc1" for q in range(3)]
    rq=[VM(s) for s in recv]
    for _ in range(env('K5NF0',100)):
        if fill: fill.pop(0)()
    e.stamp(0); e.wait(vm=tokW[0]); e("s_barrier"); e.stamp(1)
    cbar=0
    for n in range(min(LA,4)): rd(n)
    if LA>4:
        e.wait(vm=tokW[1]); e("s_barrier"); cbar=1
        for n in range(4,LA): rd(n)
    for n in range(324):
        ks,j=seq[n]; m=n+LA
        if m<324 and m in start and start.index(m)>cbar:
            c=start.index(m)
            while c not in tokW or any(it[0]<=start[c]-LA for it in items): assert can(items[0]); items.pop(0)[2]()
            e.wait(vm=tokW[c]); e("s_barrier"); cbar=c
            if c in(5,8) and not merged: e.stamp({5:2,8:3}[c])
        first = n<NA and j==0
        if first:
            while any(it[0]<=n+0.5 for it in items): assert can(items[0]); items.pop(0)[2]()
        if n==NA: e.stamp(4)
        if n==NB: e.stamp(5); assert not send; send=send2
        b=WF+4*(n%NWF)
        for t in range(2):
            if t==0: e.wait(vm=tokH[ks] if first else None, ds=rt[n])
            d=f"v[{ACC+8*j+4*t}:{ACC+8*j+4*t+3}]"
            e(f"v_mfma_f32_16x16x32_bf16 {d}, v[{b}:{b+3}], {hreg(ks,t)}, {d if n not in zero else 0}")
            if t==0 and m<324: rd(m)
            lead = LEAD if n<NA-LEAD2 else LEAD3
            rdy = items and items[0][0]<n+lead and can(items[0])
            if t==1 and rdy and (n<NA-LEAD2 or n%LDP2==0): items.pop(0)[2]()
            elif (n>=NA+SD and n not in (NB,NB+1)) and send and (SMIX or not rdy):
                for _ in range(SR if t else SR-1):
                    if send: send.pop(0)()
            elif n>=NB+PF and t==1 and rq and not items: rq.pop(0)()
            for _ in range(env('K5FR',1)):
                if fill: fill.pop(0)()
        if n==60: assert not fill
        if n==40: e.stamp(12)
    assert not items and not send
    while rq: rq.pop(0)()
    e.stamp(6)
    e("s_mov_b32 s38, 0x00003f80"); e("s_mov_b32 s39, 0x3f800000")
    def acc_add(src,dst):
        for dd,(x,y) in enumerate(dst):
            e(f"v_dot2_f32_bf16 v{x}, v{src+dd}, s38, v{x}"); e(f"v_dot2_f32_bf16 v{y}, v{src+dd}, s39, v{y}")
    def dst(t): return [(OWN+4*t,OWN+4*t+1),(OWN+4*t+2,OWN+4*t+3),(OWN+8+4*t,OWN+9+4*t),(OWN+10+4*t,OWN+11+4*t)]
    d9=[(a+2*r,a+2*r+1) for r in range(4)]
    e("s_cmp_eq_u32 s49, 0"); e(f"s_cbranch_scc1 {N}_oa")
    e("s_load_dwordx2 s[6:7], s[0:1], 56"); e("s_waitcnt lgkmcnt(0)")
    srd_ptr(e,12,6,XB)
    e("v_mul_u32_u24 v16, 1152, v14"); e("v_lshl_add_u32 v16, v15, 4, v16")
    e("v_and_b32 v17, 31, v1"); e("v_mul_u32_u24 v17, 1152, v17"); e("v_lshl_add_u32 v17, v18, 4, v17")
    e("s_mul_i32 s52, s19, 36864"); e("s_mul_i32 s48, s17, 288"); e("s_add_u32 s52, s52, s48"); e("s_lshl_b32 s48, s18, 6"); e("s_add_u32 s50, s52, s48"); e("s_add_u32 s51, s50, 18432")
    e("s_add_u32 s52, s52, 256"); e(f"s_branch {N}_ob")
    e.label(f"{N}_oa")
    srd_ptr(e,12,4,WSSIZE)
    e("v_mov_b32 v16, v6"); e("v_mov_b32 v17, v3"); e(f"s_add_u32 s50, s24, {WS['X0'][0]}"); e("s_add_u32 s51, s50, 256"); e(f"s_add_u32 s52, s23, {WS['X0'][0]+8192}")
    e.label(f"{N}_ob")
    for r in range(4): e(f"v_mov_b32 v{20+r}, 0")
    e("s_mov_b32 s53, 0x3f803f80"); e("s_mov_b32 s47, 0")
    e("s_waitcnt vmcnt(9)")
    for t in range(2): acc_add(RES+4*t,dst(t))
    acc_add(RES+8,d9)
    e(f"s_branch {N}_chk")
    e.label(f"{N}_poll")
    for s_ in recv: e(s_)
    e.label(f"{N}_chk")
    e("s_add_u32 s47, s47, 1"); e("s_waitcnt vmcnt(0)")
    e(f"v_max3_u32 v12, v{IN}, v{IN+1}, v{IN+2}"); e(f"v_max3_u32 v13, v{IN+3}, v{IN+4}, v{IN+5}")
    for r in range(6,36,2): e(f"v_max3_u32 v{12+((r>>1)&1)}, v{12+((r>>1)&1)}, v{IN+r}, v{IN+r+1}")
    e("v_max_u32 v12, v12, v13"); e("v_cmp_eq_u32 vcc, -1, v12")
    e("s_cmp_gt_u32 s47, 0x2000"); e(f"s_cbranch_scc1 {N}_go"); e(f"s_cbranch_vccnz {N}_poll")
    e.label(f"{N}_go"); e.stamp(8)
    if PROF and not merged: e("s_add_u32 s82, s66, s47")
    for q in range(3):
        for t in range(2): acc_add(IN+8*q+4*t,dst(t))
    e.nop(1)
    for t in range(2):
        for dd,(x,y) in enumerate(dst(t)): e(f"v_cvt_pk_bf16_f32 v{O+4*t+dd}, v{x}, v{y}")
        e(f"buffer_store_dwordx4 v[{O+4*t}:{O+4*t+3}], v16, s[12:15], s{50+t} offen sc1")
    e("s_cmp_lg_u32 s18, s20"); e(f"s_cbranch_scc1 {N}_no9")
    for q in range(3): acc_add(IN+24+4*q,d9)
    e.nop(1)
    for r in range(4): e(f"v_cvt_pk_bf16_f32 v{O+8+r}, v{a+2*r}, v{a+2*r+1}")
    for r in range(4):
        e(f"v_dot2c_f32_bf16 v{20+2*(r>>1)}, s53, v{O+8+r}"); e(f"v_dot2c_f32_bf16 v{21+2*(r>>1)}, v{O+8+r}, v{O+8+r}")
    e(f"v_permlane16_swap_b32 v{O+8}, v{O+10}"); e(f"v_permlane16_swap_b32 v{O+9}, v{O+11}")
    e(f"buffer_store_dwordx4 v[{O+8}:{O+11}], v17, s[12:15], s52 offen sc1")
    e.label(f"{N}_no9")
    e("s_cmp_lg_u32 s49, 0"); e(f"s_cbranch_scc1 {N}_end")
    for r in range(8):
        e(f"v_dot2c_f32_bf16 v{20+2*(r>>2)}, s53, v{O+r}"); e(f"v_dot2c_f32_bf16 v{21+2*(r>>2)}, v{O+r}, v{O+r}")
    e("s_lshl_b32 s47, s17, 2"); e("s_add_u32 s47, s47, s18"); e("s_lshl_b32 s47, s47, 14"); e("s_lshl_b32 s48, s19, 8"); e("s_add_u32 s47, s47, s48"); e(f"s_add_u32 s47, s47, {WS['ST2'][0]}")
    e("v_permlane16_swap_b32 v20, v22"); e("v_permlane16_swap_b32 v21, v23")
    e("v_add_f32 v20, v20, v22"); e("v_add_f32 v21, v21, v23"); e("v_mov_b32 v22, v20"); e("v_mov_b32 v23, v21")
    e("v_lshlrev_b32 v11, 3, v1"); e("v_lshl_or_b32 v11, v18, 31, v11")
    e("v_permlane32_swap_b32 v22, v20"); e("v_permlane32_swap_b32 v23, v21")
    e("v_add_f32 v20, v20, v22"); e("v_add_f32 v21, v21, v23")
    e("buffer_store_dwordx2 v[20:21], v11, s[8:11], s47 offen sc1")
    e.stamp(9)
def k5(mod):
    eb=E(); eb("s_cmp_ge_u32 s2, 256"); eb("s_cbranch_scc1 downb_kernel_end"); eb("s_mov_b32 s49, 1"); eb("s_branch down_common"); eb.label("downb_kernel_end")
    VG=224
    mod.add('downb_kernel',eb,vg=VG,ag=256,sg=56)
    e=E(); N='downa_kernel'
    prologue_common(e,N,256)
    e.L[2:2]=["  s_mov_b32 s49, 0","down_common:"]
    k5_body(e,N,{},0,False)
    e.label(f"{N}_end")
    mod.add(N,e,vg=VG,ag=256,sg=56)
    return (N,256,256,RING*1024),('downb_kernel',256,256,RING*1024)
```

```python
import sys
from fw import *
from lay import *
import k0
HDR=open('interleave_layers__sliding_block__glu_gated_geglu__prompt.s.ref').read().split('; Override launch')[0].rstrip()
def build():
    m=Module(); L=[]
    K0=k0.k0(m); L.append(K0)
    try:
        import k1; K1=k1.k1(m); L.append((K1[0],256)+K1[2:])
        import k2; K2=k2.k2(m); L.append(K2)
        import k3; K3a=k3.k3(m,'op_kernel','X0','X1'); L.append((K3a[0],256)+K3a[2:])
        import k4, k5, os
        if int(os.environ.get('MERGE','1')):
            Fa,Fb=k4.k4(m,'ffna_kernel','X1',True); L+=[Fa,K1,K2,K3a,Fb]
        else:
            K4a=k4.k4(m,'gu_kernel','X1'); K5a,K5b=k5.k5(m); L+=[K4a,K5a,K1,K2,K3a,K4a,K5b]
    except ModuleNotFoundError as ex:
        print("partial build:",ex,file=sys.stderr)
    for k in L: m.launch(*k)
    for er in m.errs: print(er,file=sys.stderr)
    print(len(m.errs),"hazard errors",file=sys.stderr)
    return m.text(HDR)
if __name__=='__main__':
    t=build(); open(sys.argv[1] if len(sys.argv)>1 else 'k.s','w').write(t)
```
